```python
import torch

def _softmax(x, axis=-1):
    return torch.softmax(x, dim=axis)
def _gelu(x):
    return torch.nn.functional.gelu(x, approximate="tanh")
def _silu(x):
    return torch.nn.functional.silu(x)
def _sigmoid(x):
    return torch.sigmoid(x)
def _layernorm(x, axis=-1, eps=1e-5):
    m = x.mean(dim=axis, keepdim=True)
    v = x.var(dim=axis, keepdim=True, unbiased=False)
    return (x - m) / torch.sqrt(v + eps)
def _scatter_add(tgt, idx, src, axis=0):
    return tgt.clone().index_add_(axis, idx, src)
def _segment_sum(src, seg, n):
    out = torch.zeros((n,) + src.shape[1:], dtype=src.dtype)
    return out.index_add_(0, seg, src)
def _pad(x, pw):
    flat = tuple(v for pair in reversed(pw) for v in pair)
    return torch.nn.functional.pad(x, flat)

kernel_name = 'standalone__gqa_softmax__sampling'

def setup_inputs():

    _w = (lambda a: (lambda t: t.to(torch.bfloat16) if t.is_floating_point() else t)(torch.as_tensor(a)))
    B, Hq, Hkv, Sq, Sk, D = 32, 32, 8, 8, 2048, 128
    return {
        "q": _w((lambda *s: torch.randn(*s, dtype=torch.bfloat16) * 0.8)(B, Hq, Sq, D)),
        "k": _w((lambda *s: torch.randn(*s, dtype=torch.bfloat16) * 0.8)(B, Hkv, Sk, D)),
        "v": _w((lambda *s: torch.randn(*s, dtype=torch.bfloat16) * 0.05)(B, Hkv, Sk, D)),
    }

def reference(q, k, v):
    B, Hq, Sq, D = q.shape
    Hkv = k.shape[1]
    rep = Hq // Hkv
    k = (lambda x, n, axis: torch.repeat_interleave(x, n, dim=axis))(k, rep, axis=1)
    v = (lambda x, n, axis: torch.repeat_interleave(x, n, dim=axis))(v, rep, axis=1)
    scale = D ** -0.5
    scores = torch.einsum("bhqd,bhkd->bhqk", q, k) * scale
    p = _softmax(scores, axis=-1)
    return torch.einsum("bhqk,bhkd->bhqd", p, v)
```

```python
import re

TRANS = ("v_exp_f32", "v_log_f32", "v_rcp_f32", "v_rsq_f32", "v_sqrt_f32", "v_sin_f32", "v_cos_f32",
         "v_rcp_iflag_f32")


def regs_of(tok):
    tok = tok.strip()
    neg = tok.lstrip("-")
    if neg.startswith("abs(") and neg.endswith(")"):
        neg = neg[4:-1]
    if neg.startswith("|") and neg.endswith("|"):
        neg = neg[1:-1]
    tok = neg
    m = re.fullmatch(r"([vas])(\d+)", tok)
    if m:
        return [m.group(1) + m.group(2)]
    m = re.fullmatch(r"([vas])\[(\d+):(\d+)\]", tok)
    if m:
        return [m.group(1) + str(i) for i in range(int(m.group(2)), int(m.group(3)) + 1)]
    if tok in ("vcc", "vcc_lo", "vcc_hi"):
        return ["vcc"]
    if tok in ("exec", "exec_lo", "exec_hi"):
        return ["exec"]
    if tok == "m0":
        return ["m0"]
    return []


class Ins:
    __slots__ = ("text", "op", "ops", "mods", "w", "r", "kind", "label", "target", "srcC", "srcAB",
                 "passes", "store_data", "nops", "ldst")

    def __init__(self, text):
        self.text = text
        self.label = None
        self.target = None
        self.w, self.r = set(), set()
        self.srcC, self.srcAB = set(), set()
        self.passes = 0
        self.store_data = set()
        self.ldst = set()
        t = text.split(";")[0].strip()
        if t.endswith(":"):
            self.kind = "label"
            self.label = t[:-1]
            self.op = ""
            self.ops = []
            self.mods = ""
            return
        if t == "" or t.startswith("."):
            self.kind = "dir"
            self.op = ""
            self.ops = []
            self.mods = ""
            return
        parts = t.split(None, 1)
        self.op = op = parts[0]
        rest = parts[1] if len(parts) > 1 else ""
        ops, cur, depth = [], "", 0
        for ch in rest:
            if ch in "[(":
                depth += 1
            if ch in "])":
                depth -= 1
            if ch == "," and depth == 0:
                ops.append(cur.strip())
                cur = ""
            else:
                cur += ch
        if cur.strip():
            ops.append(cur.strip())
        mods = ""
        if ops:
            last = ops[-1].split(None, 1)
            if len(last) > 1 and not op.startswith("s_waitcnt"):
                ops[-1] = last[0]
                mods = last[1]
        self.ops, self.mods = ops, mods
        R = lambda i: set(regs_of(ops[i])) if i < len(ops) else set()
        allr = lambda a: set().union(*[R(i) for i in range(a, len(ops))]) if len(ops) > a else set()
        base = re.sub(r"_(e32|e64|dpp|sdwa)$", "", op)
        if op.startswith("v_mfma"):
            self.kind = "mfma"
            self.w = R(0)
            self.srcAB = R(1) | R(2)
            self.srcC = R(3)
            self.r = self.srcAB | self.srcC
            self.passes = 4 if "16x16" in op else 8
        elif op.startswith("v_"):
            self.kind = "valu"
            if base.startswith("v_permlane") and "swap" in base:
                self.w = R(0) | R(1)
                self.r = R(0) | R(1)
            elif base.startswith("v_cmp"):
                self.w = R(0)
                self.r = allr(1)
                if base.startswith("v_cmpx"):
                    self.w |= {"exec"}
            elif base in ("v_add_co_u32", "v_sub_co_u32", "v_addc_co_u32", "v_subb_co_u32"):
                self.w = R(0) | R(1)
                self.r = allr(2)
            elif base in ("v_fmac_f32", "v_pk_fmac_f16", "v_writelane_b32"):
                self.w = R(0)
                self.r = allr(0)
            else:
                self.w = R(0)
                self.r = allr(1)
                if "dpp" in op or "row_" in mods or "quad_perm" in mods:
                    self.r |= R(0)
            self.r |= {"exec"}
        elif op.startswith(("buffer_load", "global_load")):
            self.kind = "vmem"
            if " lds" in " " + mods or "_lds_" in op:
                self.r = allr(0) | {"m0"}
                self.ldst = {"LDS"}
            else:
                self.w = R(0)
                self.ldst = R(0)
                self.r = allr(1)
        elif op.startswith(("buffer_store", "global_store", "buffer_atomic", "global_atomic")):
            self.kind = "vmem"
            self.r = allr(0)
            if op.endswith(("x3", "x4")):
                self.store_data = R(0) if op.startswith("buffer") else R(1)
            if "atomic" in op and "sc0" in mods:
                self.w = R(0)
                self.ldst = R(0)
        elif op.startswith(("buffer_wbl2", "buffer_inv")):
            self.kind = "vmem"
        elif op.startswith("ds_"):
            self.kind = "ds"
            if op.startswith(("ds_read", "ds_bpermute", "ds_permute", "ds_swizzle")) or "rtn" in op:
                self.w = R(0)
                self.ldst = R(0)
                self.r = allr(1)
            else:
                self.r = allr(0)
        elif op.startswith("s_"):
            self.kind = "salu"
            if op in ("s_waitcnt", "s_nop", "s_barrier", "s_endpgm", "s_setprio", "s_sleep"):
                self.kind = "sop"
            elif op.startswith("s_cbranch") or op == "s_branch":
                self.kind = "branch"
                self.target = ops[0]
                if "vcc" in op:
                    self.r = {"vcc"}
                if "exec" in op:
                    self.r = {"exec"}
            elif op.startswith(("s_load", "s_memtime", "s_memrealtime", "s_buffer_load")):
                self.kind = "smem"
                self.w = R(0)
                self.ldst = R(0)
                self.r = allr(1)
            elif op.startswith(("s_cmp", "s_bitcmp")):
                self.r = allr(0)
            elif "saveexec" in op:
                self.w = R(0) | {"exec"}
                self.r = allr(1) | {"exec"}
            else:
                self.w = R(0)
                self.r = allr(1)
        else:
            raise ValueError("unknown instruction: " + text)

    @property
    def states(self):
        if self.kind in ("label", "dir"):
            return 0
        if self.op == "s_nop":
            return int(self.ops[0], 0) + 1
        return 1

    def base(self):
        return re.sub(r"_(e32|e64|dpp|sdwa)$", "", self.op)


def is_v(r):
    return r[0] in "va" and r != "vcc"


def need(p, c):
    n = 0
    vw = {r for r in p.w if is_v(r)}
    sw = {r for r in p.w if not is_v(r)}
    if p.kind == "valu":
        if c.kind == "mfma" and vw & c.r:
            n = max(n, 2)
        if c.kind == "valu":
            cb = c.base()
            if p.base() in TRANS and cb not in TRANS and vw & c.r:
                n = max(n, 1)
            if p.base() in TRANS and cb in TRANS and vw & c.r:
                n = max(n, 1)
            if cb.startswith("v_permlane") and vw & c.r:
                n = max(n, 2)
            if ("dpp" in c.op or "row_" in c.mods or "quad_perm" in c.mods) and vw & c.r:
                n = max(n, 2)
            if cb in ("v_readlane_b32", "v_readfirstlane_b32") and vw & c.r:
                n = max(n, 1)
            if (sw - {"exec"}) & c.r:
                n = max(n, 4 if cb in ("v_readlane_b32", "v_writelane_b32") else 2)
            if "exec" in sw:
                n = max(n, 5)
            if "sdwa" in p.op or "op_sel:" in p.mods:
                if vw & (c.r | c.w):
                    n = max(n, 1)
        if c.kind == "mfma" and "exec" in sw:
            n = max(n, 4)
        if c.kind == "vmem" and sw & c.r:
            n = max(n, 5)
        if c.kind in ("salu", "smem", "branch") and sw & c.r:
            n = max(n, 1)
    if p.kind == "mfma":
        four = p.passes == 4
        if c.kind == "mfma":
            if p.w & c.srcAB:
                n = max(n, 8 if four else 12)
            if p.w & c.srcC:
                if not (p.w == c.srcC and p.passes == c.passes):
                    n = max(n, 6 if four else 10)
            elif p.w & c.w:
                if not (p.w == c.w and p.passes == c.passes):
                    n = max(n, 6 if four else 10)
        elif c.kind == "valu":
            if p.w & (c.r | c.w):
                n = max(n, 8 if four else 12)
            if p.srcC & c.w:
                n = max(n, 3 if four else 7)
        elif c.kind in ("vmem", "ds"):
            if p.w & (c.r | c.w):
                n = max(n, 8 if four else 12)
            if p.srcC & c.w:
                n = max(n, 3 if four else 7)
    if p.kind == "vmem" and p.store_data:
        if c.kind in ("valu", "mfma") and p.store_data & c.w:
            n = max(n, 2)
        elif p.store_data & c.w:
            n = max(n, 1)
    if p.kind == "salu" and "m0" in p.w and "m0" in c.r and c.kind in ("vmem", "ds"):
        n = max(n, 1)
    return n


class Prog:
    def __init__(self):
        self.ins = []

    def __call__(self, text):
        for line in text.split("\n"):
            if line.strip():
                self.ins.append(Ins(line.strip()))

    def preds(self):
        labels = {x.label: i for i, x in enumerate(self.ins) if x.kind == "label"}
        pr = [[] for _ in self.ins]
        for i, x in enumerate(self.ins):
            if x.kind == "branch":
                if x.target in labels:
                    pr[labels[x.target]].append(i)
                if x.op == "s_branch":
                    continue
            if x.op == "s_endpgm":
                continue
            if i + 1 < len(self.ins):
                pr[i + 1].append(i)
        return pr

    def fix_hazards(self, verbose=False):
        total = 0
        for _ in range(10000):
            pr = self.preds()
            fix = None
            for i, c in enumerate(self.ins):
                if c.kind in ("label", "dir", "sop"):
                    continue
                worst = 0
                stack = [(p, 0) for p in pr[i]]
                seen = {}
                while stack:
                    j, d = stack.pop()
                    if d >= 13 or seen.get(j, 99) <= d:
                        continue
                    seen[j] = d
                    p = self.ins[j]
                    if p.kind not in ("label", "dir", "sop"):
                        k = need(p, c) - d
                        if k > worst:
                            worst = k
                            why = p
                    for q in pr[j]:
                        stack.append((q, d + p.states))
                if worst > 0:
                    fix = (i, worst, why)
                    break
            if fix is None:
                return total
            i, k, why = fix
            if verbose:
                print("nop %d before [%s] after [%s]" % (k, self.ins[i].text, why.text))
            self.ins.insert(i, Ins("s_nop %d" % (k - 1)))
            total += k
        raise RuntimeError("hazard pass did not converge")

    def check_waits(self, trips):
        labels = {x.label: i for i, x in enumerate(self.ins) if x.kind == "label"}
        trips = {k: list(v) for k, v in trips.items()}
        vm, lg = [], []
        smem_out = 0
        i = 0
        steps = 0
        maxvm = 0
        while i < len(self.ins):
            steps += 1
            assert steps < 2000000
            x = self.ins[i]
            if x.op == "s_endpgm":
                break
            if x.op == "s_waitcnt":
                t = " ".join(x.ops)
                m = re.search(r"vmcnt\((\d+)\)", t)
                if m:
                    n = int(m.group(1))
                    while len(vm) > n:
                        vm.pop(0)
                m = re.search(r"lgkmcnt\((\d+)\)", t)
                if m:
                    n = int(m.group(1))
                    if any(k == "smem" for k, _ in lg):
                        if n == 0:
                            lg.clear()
                    else:
                        while len(lg) > n:
                            lg.pop(0)
            elif x.kind not in ("label", "dir", "sop"):
                touched = (x.r | x.w) - {"exec"}
                for k, d in vm:
                    if d & touched:
                        raise RuntimeError("vmcnt violation at [%s]: %s outstanding" % (x.text, sorted(d & touched)))
                for k, d in lg:
                    if d & touched:
                        raise RuntimeError("lgkmcnt violation at [%s]: %s outstanding" % (x.text, sorted(d & touched)))
                if x.kind == "vmem":
                    vm.append(("vm", {r for r in x.ldst if r != "LDS"}))
                    maxvm = max(maxvm, len(vm))
                    assert len(vm) <= 63, "more than 63 vmem ops outstanding at " + x.text
                elif x.kind == "ds":
                    lg.append(("ds", set(x.ldst)))
                elif x.kind == "smem":
                    lg.append(("smem", set(x.ldst)))
            if x.kind == "branch":
                if x.op == "s_branch":
                    i = labels[x.target]
                    continue
                q = trips.get(x.target)
                if q and q.pop(0):
                    i = labels[x.target]
                    continue
            i += 1
        return maxvm

    def text(self):
        out = []
        for x in self.ins:
            out.append(x.text if x.kind in ("label", "dir") else "    " + x.text)
        return "\n".join(out) + "\n"
```

```python
import sys
import struct
import math
from asmlib import Prog

HEADER = """; Kernarg layout (48 bytes, ptrs only, base s[0:1]):
; @launch grid=(256,1,1) block=({threads},1,1) lds={lds}
.amdgcn_target "amdgcn-amd-amdhsa--gfx950"
.text
.globl standalone__gqa_softmax__sampling_kernel
.p2align 8
.type standalone__gqa_softmax__sampling_kernel,@function
standalone__gqa_softmax__sampling_kernel:
"""
FOOTER = """.section .rodata,"a"
.p2align 6
.amdhsa_kernel standalone__gqa_softmax__sampling_kernel
  .amdhsa_next_free_vgpr {nfv}
  .amdhsa_next_free_sgpr {nfs}
  .amdhsa_accum_offset {acc}
  .amdhsa_group_segment_fixed_size 0
  .amdhsa_kernarg_size 48
  .amdhsa_user_sgpr_count 2
  .amdhsa_user_sgpr_kernarg_segment_ptr 1
  .amdhsa_system_sgpr_workgroup_id_x 1
  .amdhsa_float_denorm_mode_32 3
.end_amdhsa_kernel
"""


def f32(x):
    return "0x%08x" % struct.unpack("<I", struct.pack("<f", x))[0]


def vr(b, n=1):
    return "v%d" % b if n == 1 else "v[%d:%d]" % (b, b + n - 1)


def ar(b, n=1):
    return "a%d" % b if n == 1 else "a[%d:%d]" % (b, b + n - 1)


def gen(NB=3, kfl="", vfl="", layout="inter", rot=0, diag=False, nocompute=False, kcoal=False, qfl=""):
    NW = 4
    NT = 64 // NW
    p = Prog()
    C = 128 ** -0.5 * math.log2(math.e)
    sQ, sK, sV, sO = 8, 12, 16, 20
    sW = 24
    sC = 25
    sSelLo, sSelHi = 26, 27
    sT = 28
    sKoff, sVoff = 29, 30
    sLoop = 31
    sRot = 32
    sBase = 33
    sD = 36
    sTS = 40
    vK0, vK1, vV0, vV1 = 1, 2, 3, 4
    vQ0, vQ1 = 5, 6
    vM = 8
    vL = 10
    vT = 12
    vNM = 20
    vAl = 22
    vS = 28
    vP = 44
    vVT = 52
    vO = 68
    vV = 132
    nV = vV + NB * 32
    aQ = 0
    aK = 32
    nA = aK + NB * 32
    acc_off = (nV + 3) // 4 * 4
    S = lambda t, h: vS + (t * 2 + h) * 4
    O = lambda h, j: vO + (h * 8 + j) * 4
    Kb = lambda b, t, i: aK + b * 32 + (t * 4 + i) * 4
    Vb = lambda b, e: vV + b * 32 + e * 4
    Qf = lambda h, i: aQ + (h * 4 + i) * 4

    p("s_cmp_ge_u32 s2, 256")
    p("s_cbranch_scc1 L_end")
    p("s_load_dwordx4 s[4:7], s[0:1], 0")
    p("s_load_dwordx4 s[56:59], s[0:1], 16")
    if diag:
        p("s_load_dwordx2 s[60:61], s[0:1], 40")
        p("s_memrealtime s[40:41]")
    p("v_and_b32 v7, 63, v0")
    p("v_lshrrev_b32 v12, 6, v0")
    p("v_and_b32 v13, 15, v7")
    p("v_lshrrev_b32 v14, 4, v7")
    p("v_readfirstlane_b32 s%d, v12" % sW)
    p("v_lshlrev_b32 v15, 8, v13")
    p("v_lshl_add_u32 v%d, v14, 4, v15" % vQ0)
    p("v_add_u32 v%d, 4096, v%d" % (vQ1, vQ0))
    p("v_lshlrev_b32 v%d, 4, v7" % vV0)
    p("v_add_u32 v%d, 4096, v%d" % (vV1, vV0))
    if kcoal:
        p("v_mov_b32 v%d, v%d" % (vK0, vV0))
    else:
        p("v_and_b32 v15, 3, v13")
        p("v_lshrrev_b32 v16, 2, v13")
        p("v_lshl_add_u32 v15, v15, 2, v16")
        p("v_lshlrev_b32 v15, 8, v15")
        p("v_lshl_add_u32 v%d, v14, 4, v15" % vK0)
    p("v_add_u32 v%d, 4096, v%d" % (vK1, vK0))
    p("s_mov_b32 s%d, %s" % (sC, f32(C)))
    p("s_mov_b32 s%d, 0x05040100" % sSelLo)
    p("s_mov_b32 s%d, 0x07060302" % sSelHi)
    p("s_lshl_b32 s34, s2, 13")
    p("s_lshl_b32 s35, s2, 19")
    if layout == "inter":
        p("s_lshl_b32 s%d, s%d, 13" % (sBase, sW))
        tshift = 15
    else:
        p("s_lshl_b32 s%d, s%d, 17" % (sBase, sW))
        tshift = 13
    if rot == 0:
        p("s_mov_b32 s%d, 0" % sRot)
    elif rot == 1:
        p("s_lshr_b32 s%d, s2, 3" % sRot)
    elif rot == 2:
        p("s_mov_b32 s%d, s2" % sRot)
    elif rot == 3:
        p("s_lshr_b32 s%d, s2, 4" % sRot)
    p("s_waitcnt lgkmcnt(0)")
    for srd, lo, sh, size in ((sQ, 4, 34, 8192), (sK, 6, 35, 524288), (sV, 56, 35, 524288), (sO, 58, 34, 8192)):
        p("s_add_u32 s%d, s%d, s%d" % (srd, lo, sh))
        p("s_addc_u32 s%d, s%d, 0" % (srd + 1, lo + 1))
        p("s_mov_b32 s%d, %d" % (srd + 2, size))
        p("s_mov_b32 s%d, 0x20000" % (srd + 3))

    def tile_off(dst, t_imm=None):
        p("s_add_u32 s%d, s%d, s%d" % (dst, sT, sRot))
        p("s_and_b32 s%d, s%d, %d" % (dst, dst, NT - 1))
        p("s_lshl_b32 s%d, s%d, %d" % (dst, dst, tshift))
        p("s_add_u32 s%d, s%d, s%d" % (dst, dst, sBase))

    def load_k(b):
        tile_off(sKoff)
        for t in range(2):
            for i in range(4):
                off = (1024 * i) if kcoal else (64 * i)
                p("buffer_load_dwordx4 %s, v%d, s[%d:%d], s%d offen offset:%d %s" % (
                    ar(Kb(b, t, i), 4), vK0 + t, sK, sK + 3, sKoff, off, kfl))

    def load_v(b):
        tile_off(sVoff)
        for e in range(8):
            p("buffer_load_dwordx4 %s, v%d, s[%d:%d], s%d offen offset:%d %s" % (
                vr(Vb(b, e), 4), vV0 + e // 4, sV, sV + 3, sVoff, 1024 * (e % 4), vfl))
        p("s_add_u32 s%d, s%d, 1" % (sT, sT))

    p("s_mov_b32 s%d, 0" % sT)
    load_k(0)
    for h in range(2):
        for i in range(4):
            p("buffer_load_dwordx4 %s, v%d, s[%d:%d], 0 offen offset:%d %s" % (ar(Qf(h, i), 4), vQ0 + h, sQ, sQ + 3, 64 * i, qfl))
    load_v(0)
    for b in range(1, NB):
        load_k(b)
        load_v(b)
    for h in range(2):
        p("v_mov_b32 v%d, 0xff800000" % (vM + h))
        p("v_mov_b32 v%d, 0" % (vL + h))
    for i in range(64):
        p("v_mov_b32 v%d, 0" % (vO + i))

    def tile(b, nxt, after):
        p("s_waitcnt vmcnt(%d)" % (8 + 16 * after))
        if not nocompute:
            for i in range(4):
                for t in range(2):
                    for h in range(2):
                        p("v_mfma_f32_16x16x32_bf16 %s, %s, %s, %s" % (
                            vr(S(t, h), 4), ar(Kb(b, t, i), 4), ar(Qf(h, i), 4), "0" if i == 0 else vr(S(t, h), 4)))
        else:
            p("v_mfma_f32_16x16x32_bf16 %s, %s, %s, 0" % (vr(S(0, 0), 4), ar(Kb(b, 0, 0), 4), ar(Kb(b, 1, 3), 4)))
        if nxt:
            load_k(b)
        if not nocompute:
            for h in range(2):
                a, c = S(0, h), S(1, h)
                p("v_max3_f32 v%d, v%d, v%d, v%d" % (vT + h, a, a + 1, a + 2))
                p("v_max3_f32 v%d, v%d, v%d, v%d" % (vT + 2 + h, a + 3, c, c + 1))
                p("v_max3_f32 v%d, v%d, v%d, v%d" % (vT + h, c + 2, c + 3, vT + h))
                p("v_max_f32 v%d, v%d, v%d" % (vT + h, vT + h, vT + 2 + h))
            p("v_permlane32_swap_b32 v%d, v%d" % (vT, vT + 1))
            p("v_max_f32 v%d, v%d, v%d" % (vT, vT, vT + 1))
            p("v_mov_b32 v%d, v%d" % (vT + 1, vT))
            p("v_permlane16_swap_b32 v%d, v%d" % (vT, vT + 1))
            p("v_max_f32 v%d, v%d, v%d" % (vT, vT, vT + 1))
            p("v_mov_b32 v%d, v%d" % (vT + 1, vT))
            p("v_permlane32_swap_b32 v%d, v%d" % (vT, vT + 1))
            al = (vAl, vAl + 2)
            for h in range(2):
                p("v_max_f32 v%d, v%d, v%d" % (vT + h, vT + h, vM + h))
            for h in range(2):
                p("v_mul_f32 v%d, s%d, v%d" % (vNM + h, sC, vT + h))
            for h in range(2):
                p("v_fma_f32 v%d, v%d, s%d, -v%d" % (al[h], vM + h, sC, vNM + h))
            for h in range(2):
                p("v_mov_b32 v%d, v%d" % (vM + h, vT + h))
            for h in range(2):
                p("v_exp_f32 v%d, v%d" % (al[h], al[h]))
            for h in range(2):
                for t in range(2):
                    for r in range(4):
                        x = S(t, h) + r
                        p("v_fma_f32 v%d, v%d, s%d, -v%d" % (x, x, sC, vNM + h))
            for h in range(2):
                for t in range(2):
                    for r in range(4):
                        x = S(t, h) + r
                        p("v_exp_f32 v%d, v%d" % (x, x))
            for h in range(2):
                for k in range(0, 32, 2):
                    x = O(h, 0) + k
                    p("v_pk_mul_f32 %s, %s, %s op_sel_hi:[1,0]" % (vr(x, 2), vr(x, 2), vr(al[h], 2)))
            for h in range(2):
                a, c = S(0, h), S(1, h)
                p("v_cvt_pk_bf16_f32 v%d, v%d, v%d" % (vP + 4 * h, a, a + 1))
                p("v_cvt_pk_bf16_f32 v%d, v%d, v%d" % (vP + 4 * h + 1, a + 2, a + 3))
                p("v_cvt_pk_bf16_f32 v%d, v%d, v%d" % (vP + 4 * h + 2, c, c + 1))
                p("v_cvt_pk_bf16_f32 v%d, v%d, v%d" % (vP + 4 * h + 3, c + 2, c + 3))
            for h in range(2):
                a, c = S(0, h), S(1, h)
                p("v_fma_f32 v%d, v%d, v%d, v%d" % (vL + h, vL + h, al[h], a))
                p("v_add_f32 v%d, v%d, v%d" % (vT + 2 + h, a + 1, a + 2))
                p("v_add_f32 v%d, v%d, v%d" % (vT + 4 + h, a + 3, c))
                p("v_add_f32 v%d, v%d, v%d" % (vT + 6 + h, c + 1, c + 2))
            for h in range(2):
                c = S(1, h)
                p("v_add_f32 v%d, v%d, v%d" % (vL + h, vL + h, c + 3))
                p("v_add_f32 v%d, v%d, v%d" % (vT + 2 + h, vT + 2 + h, vT + 4 + h))
                p("v_add_f32 v%d, v%d, v%d" % (vL + h, vL + h, vT + 6 + h))
                p("v_add_f32 v%d, v%d, v%d" % (vL + h, vL + h, vT + 2 + h))
        p("s_waitcnt vmcnt(%d)" % (16 * after + (8 if nxt else 0)))
        if not nocompute:
            def perms(w):
                base = vVT + (w & 1) * 8
                for par, sel in ((0, sSelLo), (1, sSelHi)):
                    for u in range(4):
                        p("v_perm_b32 v%d, v%d, v%d, s%d" % (base + par * 4 + u, Vb(b, 2 * u + 1) + w, Vb(b, 2 * u) + w, sel))

            def mf(w):
                base = vVT + (w & 1) * 8
                for par in range(2):
                    for h in range(2):
                        j = 2 * w + par
                        p("v_mfma_f32_16x16x32_bf16 %s, %s, %s, %s" % (vr(O(h, j), 4), vr(base + par * 4, 4), vr(vP + 4 * h, 4), vr(O(h, j), 4)))
            perms(0)
            perms(1)
            mf(0)
            perms(2)
            mf(1)
            perms(3)
            if nxt:
                load_v(b)
            mf(2)
            mf(3)
        else:
            p("v_xor_b32 v%d, v%d, v%d" % (vT, Vb(b, 0), Vb(b, 7) + 3))
            if nxt:
                load_v(b)

    nloop = (NT - NB) // NB
    p("s_mov_b32 s%d, %d" % (sLoop, nloop))
    p("L_loop:")
    for b in range(NB):
        tile(b, True, NB - 1)
    p("s_sub_u32 s%d, s%d, 1" % (sLoop, sLoop))
    p("s_cmp_lg_u32 s%d, 0" % sLoop)
    p("s_cbranch_scc1 L_loop")
    for t in range(nloop * NB, NT):
        nxt = t + NB < NT
        after = min(NB - 1, NT - 1 - t)
        tile(t % NB, nxt, after)

    if diag:
        p("s_memrealtime s[42:43]")
    p("v_permlane32_swap_b32 v%d, v%d" % (vL, vL + 1))
    p("v_permlane32_swap_b32 v%d, v%d" % (vM, vM + 1))
    p("v_add_f32 v%d, v%d, v%d" % (vL, vL, vL + 1))
    p("v_mov_b32 v%d, v%d" % (vL + 1, vL))
    p("v_permlane16_swap_b32 v%d, v%d" % (vL, vL + 1))
    p("v_add_f32 v%d, v%d, v%d" % (vM + 1, vL, vL + 1))
    p("s_lshl_b32 s34, s%d, 14" % sW)
    p("v_lshl_add_u32 v12, v7, 4, s34")
    p("s_lshl_b32 s35, s%d, 9" % sW)
    p("s_add_u32 s35, s35, 65536")
    p("v_lshl_add_u32 v13, v7, 3, s35")
    p("ds_write_b64 v13, %s" % vr(vM, 2))
    for k in range(16):
        p("ds_write_b128 v12, %s offset:%d" % (vr(vO + 4 * k, 4), 1024 * k))
    p("s_lshr_b32 s34, s%d, 1" % sW)
    p("s_and_b32 s35, s%d, 1" % sW)
    p("s_lshl_b32 s48, s34, 8")
    p("s_add_u32 s48, s48, 65536")
    p("v_and_b32 v14, 15, v7")
    p("v_lshl_add_u32 v13, v14, 3, s48")
    p("s_lshl_b32 s48, s%d, 12" % sW)
    p("v_lshl_add_u32 v12, v7, 4, s48")
    p("s_lshl_b32 s34, s34, 12")
    p("s_lshl_b32 s35, s35, 3")
    p("s_add_u32 s34, s34, s35")
    p("v_lshrrev_b32 v15, 4, v7")
    p("v_lshlrev_b32 v15, 6, v15")
    p("v_lshl_add_u32 v15, v14, 8, v15")
    p("v_add_u32 v15, s34, v15")
    p("s_waitcnt lgkmcnt(0)")
    p("s_barrier")
    ML = 16
    for w in range(4):
        p("ds_read_b64 %s, v13 offset:%d" % (vr(ML + 2 * w, 2), 512 * w))
    R = vO
    for w in range(4):
        for jj in range(4):
            p("ds_read_b128 %s, v12 offset:%d" % (vr(R + 16 * w + 4 * jj, 4), 16384 * w + 1024 * jj))
            if w == 2 and jj == 1:
                pass
    p("s_waitcnt lgkmcnt(15)")
    p("s_waitcnt lgkmcnt(15)")
    p("s_waitcnt lgkmcnt(0)")
    p("v_max3_f32 v24, v16, v18, v20")
    p("v_max_f32 v24, v24, v22")
    for w in range(4):
        p("v_sub_f32 v%d, v%d, v24" % (ML + 2 * w, ML + 2 * w))
    for w in range(4):
        p("v_mul_f32 v%d, s%d, v%d" % (ML + 2 * w, sC, ML + 2 * w))
    for w in range(4):
        p("v_exp_f32 v%d, v%d" % (ML + 2 * w, ML + 2 * w))
    p("v_mul_f32 v24, v16, v17")
    for w in range(1, 4):
        p("v_fma_f32 v24, v%d, v%d, v24" % (ML + 2 * w, ML + 2 * w + 1))
    p("v_rcp_f32 v24, v24")
    for w in range(4):
        p("v_mul_f32 v%d, v%d, v24" % (ML + 2 * w, ML + 2 * w))
    for k in range(16):
        p("v_mul_f32 v%d, v%d, v16" % (R + k, R + k))
    for w in range(1, 4):
        for k in range(16):
            p("v_fma_f32 v%d, v%d, v%d, v%d" % (R + k, R + 16 * w + k, ML + 2 * w, R + k))
    for r in range(4):
        p("v_cvt_pk_bf16_f32 v%d, v%d, v%d" % (vS + 2 * r, R + r, R + 4 + r))
        p("v_cvt_pk_bf16_f32 v%d, v%d, v%d" % (vS + 2 * r + 1, R + 8 + r, R + 12 + r))
    for r in range(4):
        p("buffer_store_dwordx2 %s, v15, s[%d:%d], 0 offen offset:%d" % (vr(vS + 2 * r, 2), sO, sO + 3, 16 * r))
    if diag:
        p("s_waitcnt vmcnt(0)")
        p("s_memrealtime s[44:45]")
        p("s_getreg_b32 s46, hwreg(HW_REG_XCC_ID)")
        p("s_getreg_b32 s47, hwreg(HW_REG_HW_ID)")
        p("s_waitcnt lgkmcnt(0)")
        p("s_mov_b32 s36, s60")
        p("s_mov_b32 s37, s61")
        p("s_mov_b32 s38, 32768")
        p("s_mov_b32 s39, 0x20000")
        for k in range(8):
            p("v_mov_b32 v%d, s%d" % (16 + k, 40 + k))
        p("s_lshl_b32 s34, s2, 2")
        p("s_add_u32 s34, s34, s%d" % sW)
        p("s_lshl_b32 s34, s34, 5")
        p("v_mov_b32 v12, s34")
        p("v_cmp_eq_u32 vcc, 0, v7")
        p("s_and_saveexec_b64 s[50:51], vcc")
        p("buffer_store_dwordx4 v[16:19], v12, s[36:39], 0 offen")
        p("buffer_store_dwordx4 v[20:23], v12, s[36:39], 0 offen offset:16")
    p("L_end:")
    p("s_endpgm")
    p.fix_hazards()
    trips = {"L_loop": [True] * (nloop - 1) + [False]}
    mx = p.check_waits(trips)
    txt = HEADER.format(threads=64 * NW, lds=65536 + 2048) + p.text() + FOOTER.format(nfv=acc_off + nA, nfs=64, acc=acc_off)
    return txt


if __name__ == "__main__":
    import argparse
    ap = argparse.ArgumentParser()
    ap.add_argument("-o", default="out.s")
    ap.add_argument("--nb", type=int, default=3)
    ap.add_argument("--kfl", default="")
    ap.add_argument("--vfl", default="")
    ap.add_argument("--layout", default="inter")
    ap.add_argument("--rot", type=int, default=0)
    ap.add_argument("--diag", action="store_true")
    ap.add_argument("--nocompute", action="store_true")
    ap.add_argument("--kcoal", action="store_true")
    a = ap.parse_args()
    open(a.o, "w").write(gen(a.nb, a.kfl, a.vfl, a.layout, a.rot, a.diag, a.nocompute, a.kcoal))
```

```python
import math
import argparse
from asmlib import Prog
from gen1 import HEADER, FOOTER, f32, vr, ar


def gen(a):
    NB = a.nb
    diag = a.diag
    kfl, vfl, qfl, ofl = a.kfl, a.vfl, a.qfl, a.ofl
    NW = 4
    NT = 64 // NW
    assert NT % NB == 0
    p = Prog()
    C = 128 ** -0.5 * math.log2(math.e)
    sK, sV, sQ, sO = 12, 16, 20, 24
    sC, sSelLo, sSelHi = 28, 29, 30
    sOff = 31
    sTmp = 32
    sW = 34
    vK0, vK1, vV0, vV1, vQ0, vQ1 = 1, 2, 3, 4, 5, 6
    vLane = 7
    vM, vL, vT, vNM, vAl = 8, 10, 12, 20, 22
    vAW, vAO = 26, 27
    vS, vP = 28, 44
    vVT = 52
    nVT = 16
    vO = vVT + nVT
    vV = vO + 64
    nV = vV + NB * 32
    vTr = nV
    if a.trace:
        nV += 2
    aQ, aK = 0, 32
    nA = aK + NB * 32
    acc_off = (nV + 3) // 4 * 4
    S = lambda t, h: vS + (t * 2 + h) * 4
    O = lambda h, j: vO + (h * 8 + j) * 4
    Kb = lambda b, t, i: aK + b * 32 + (t * 4 + i) * 4
    Vb = lambda b, e: vV + b * 32 + e * 4
    Qf = lambda h, i: aQ + (h * 4 + i) * 4
    srd = lambda s: "s[%d:%d]" % (s, s + 3)

    p("s_load_dwordx8 s[4:11], s[0:1], 0")
    p("s_cmp_ge_u32 s2, 256")
    p("s_cbranch_scc1 L_end")
    if diag:
        p("s_memrealtime s[40:41]")
        p("s_load_dwordx2 s[60:61], s[0:1], 40")
    if a.pre:
        p("s_getpc_b64 s[36:37]")
        p("v_lshlrev_b32 v12, 6, v0")
        p("v_min_u32 v12, %d, v12" % a.pre)
        p("global_load_dword v13, v12, s[36:37]")
    if a.perm:
        p("s_and_b32 s33, s2, 7")
        p("s_lshr_b32 s35, s2, 3")
        p("s_lshl_b32 s33, s33, 5")
        p("s_or_b32 s33, s33, s35")
    else:
        p("s_mov_b32 s33, s2")
    p("s_lshl_b32 s35, s33, 19")
    p("s_lshl_b32 s33, s33, 13")
    p("v_lshrrev_b32 v14, 6, v0")
    p("v_and_b32 v%d, 63, v0" % vLane)
    p("v_lshlrev_b32 v15, 13, v14")
    p("v_and_b32 v16, 3, v0")
    p("v_bfe_u32 v17, v0, 2, 2")
    p("v_lshl_add_u32 v16, v16, 2, v17")
    p("v_lshl_add_u32 v16, v16, 8, v15")
    p("v_and_b32 v17, 0x30, v0")
    p("v_add_u32 v%d, v16, v17" % vK0)
    p("v_add_u32 v%d, 4096, v%d" % (vK1, vK0))
    p("v_and_b32 v16, 15, v0")
    p("v_lshl_add_u32 v16, v16, 8, v17")
    p("v_bfe_u32 v18, v0, 7, 1")
    p("v_lshl_add_u32 v%d, v18, 12, v16" % vQ0)
    p("v_xor_b32 v%d, 4096, v%d" % (vQ1, vQ0))
    p("v_bfe_u32 v18, v0, 6, 1")
    p("v_lshlrev_b32 v19, 1, v18")
    p("v_xor_b32 v19, v19, v%d" % vLane)
    p("v_lshl_add_u32 v%d, v19, 4, v15" % vV0)
    p("v_add_u32 v%d, 4096, v%d" % (vV1, vV0))
    for s, size in ((sK, 524288), (sV, 524288), (sQ, 8192), (sO, 8192)):
        p("s_mov_b32 s%d, %d" % (s + 2, size))
        p("s_mov_b32 s%d, 0x20000" % (s + 3))
    p("s_mov_b32 s%d, 0" % sOff)
    if a.trace:
        p("s_mov_b32 s56, 0")
    p("s_waitcnt lgkmcnt(0)")

    def mk(s, lo, sh):
        p("s_add_u32 s%d, s%d, s%d" % (s, lo, sh))
        p("s_addc_u32 s%d, s%d, 0" % (s + 1, lo + 1))

    def load_k(b, only=None):
        for t in range(2):
            for i in range(4):
                if only is None or only == (t, i):
                    p("buffer_load_dwordx4 %s, v%d, %s, s%d offen offset:%d %s" % (ar(Kb(b, t, i), 4), vK0 + t, srd(sK), sOff, 64 * i, kfl))

    def load_v(b):
        for e in range(8):
            p("buffer_load_dwordx4 %s, v%d, %s, s%d offen offset:%d %s" % (vr(Vb(b, e), 4), vV0 + e // 4, srd(sV), sOff, 1024 * (e % 4), vfl))
        p("s_add_u32 s%d, s%d, %d" % (sOff, sOff, 8192 * NW))

    mk(sK, 6, 35)
    load_k(0)
    mk(sQ, 4, 33)
    for h in range(2):
        for i in range(4):
            p("buffer_load_dwordx4 %s, v%d, %s, 0 offen offset:%d %s" % (ar(Qf(h, i), 4), vQ0 + h, srd(sQ), 64 * i, qfl))
    mk(sV, 8, 35)
    load_v(0)
    for b in range(1, NB):
        load_k(b)
        load_v(b)
    mk(sO, 10, 33)
    p("s_mov_b32 s%d, %s" % (sC, f32(C)))
    p("s_mov_b32 s%d, 0x05040100" % sSelLo)
    p("s_mov_b32 s%d, 0x07060302" % sSelHi)
    p("v_lshlrev_b32 v15, 12, v14")
    p("v_lshl_add_u32 v%d, v%d, 3, v15" % (vAW, vLane))
    p("v_and_b32 v16, 0x1f00, v%d" % vQ0)
    p("v_lshlrev_b32 v17, 2, v17")
    p("v_lshl_add_u32 v17, v18, 5, v17")
    p("v_add_u32 v%d, v16, v17" % vAO)
    if diag:
        p("v_readfirstlane_b32 s%d, v14" % sW)
    for h in range(2):
        p("v_mov_b32 v%d, 0xff800000" % (vM + h))
        p("v_mov_b32 v%d, 0" % (vL + h))
    for i in range(0, 64, 2):
        p("v_pk_mul_f32 %s, %s, 0 op_sel_hi:[1,0]" % (vr(vO + i, 2), vr(vL, 2)))

    al = (vAl, vAl + 2)

    def stamp():
        if a.trace:
            p("s_memrealtime s[52:53]")
            p("v_cmp_eq_u32 s[54:55], s56, v%d" % vLane)
            p("s_add_u32 s56, s56, 1")
            p("s_waitcnt lgkmcnt(0)")
            p("v_mov_b32 v%d, s52" % (vTr + 1))
            p("v_cndmask_b32 v%d, v%d, v%d, s[54:55]" % (vTr, vTr, vTr + 1))

    def tile(b):
        lastK = 8 + 16 * (NB - 1 - b)
        p("s_waitcnt vmcnt(%d)" % (8 + 16 * (NB - 1)))
        if b > 0:
            p("s_cbranch_vccz L_wk%d" % b)
            p("s_waitcnt vmcnt(%d)" % lastK)
            p("L_wk%d:" % b)
        if diag and b == 0:
            p("s_cmp_lg_u32 s%d, %d" % (sOff, 8192 * NW * NB))
            p("s_cbranch_scc1 L_nostamp")
            p("s_memrealtime s[48:49]")
            p("L_nostamp:")
        stamp()
        for i in range(4):
            for t in range(2):
                for h in range(2):
                    p("v_mfma_f32_16x16x32_bf16 %s, %s, %s, %s" % (
                        vr(S(t, h), 4), ar(Kb(b, t, i), 4), ar(Qf(h, i), 4), "0" if i == 0 else vr(S(t, h), 4)))
        p("s_cbranch_vccnz L_nk%d" % b)
        load_k(b)
        p("L_nk%d:" % b)
        for h in range(2):
            x, c = S(0, h), S(1, h)
            p("v_max3_f32 v%d, v%d, v%d, v%d" % (vT + h, x, x + 1, x + 2))
            p("v_max3_f32 v%d, v%d, v%d, v%d" % (vT + 2 + h, x + 3, c, c + 1))
            p("v_max3_f32 v%d, v%d, v%d, v%d" % (vT + h, c + 2, c + 3, vT + h))
            p("v_max3_f32 v%d, v%d, v%d, v%d" % (vT + h, vT + h, vT + 2 + h, vM + h))
        p("v_permlane32_swap_b32 v%d, v%d" % (vT, vT + 1))
        p("v_max_f32 v%d, v%d, v%d" % (vT, vT, vT + 1))
        p("v_mov_b32 v%d, v%d" % (vT + 1, vT))
        p("v_permlane16_swap_b32 v%d, v%d" % (vT, vT + 1))
        p("v_max_f32 v%d, v%d, v%d" % (vT, vT, vT + 1))
        p("v_mov_b32 v%d, v%d" % (vT + 1, vT))
        p("v_permlane32_swap_b32 v%d, v%d" % (vT, vT + 1))
        for h in range(2):
            p("v_mul_f32 v%d, s%d, v%d" % (vNM + h, sC, vT + h))
        for h in range(2):
            p("v_fma_f32 v%d, v%d, s%d, -v%d" % (al[h], vM + h, sC, vNM + h))
        for h in range(2):
            p("v_mov_b32 v%d, v%d" % (vM + h, vT + h))
        for h in range(2):
            p("v_exp_f32 v%d, v%d" % (al[h], al[h]))
        for h in range(2):
            for t in range(2):
                for r in range(4):
                    x = S(t, h) + r
                    p("v_fma_f32 v%d, v%d, s%d, -v%d" % (x, x, sC, vNM + h))
        for h in range(2):
            for t in range(2):
                for r in range(4):
                    x = S(t, h) + r
                    p("v_exp_f32 v%d, v%d" % (x, x))
        for h in range(2):
            for k in range(0, 32, 2):
                x = O(h, 0) + k
                p("v_pk_mul_f32 %s, %s, %s op_sel_hi:[1,0]" % (vr(x, 2), vr(x, 2), vr(al[h], 2)))
        for h in range(2):
            x, c = S(0, h), S(1, h)
            p("v_cvt_pk_bf16_f32 v%d, v%d, v%d" % (vP + 4 * h, x, x + 1))
            p("v_cvt_pk_bf16_f32 v%d, v%d, v%d" % (vP + 4 * h + 1, x + 2, x + 3))
            p("v_cvt_pk_bf16_f32 v%d, v%d, v%d" % (vP + 4 * h + 2, c, c + 1))
            p("v_cvt_pk_bf16_f32 v%d, v%d, v%d" % (vP + 4 * h + 3, c + 2, c + 3))
        for h in range(2):
            x, c = S(0, h), S(1, h)
            p("v_pk_add_f32 %s, %s, %s" % (vr(x, 2), vr(x, 2), vr(x + 2, 2)))
            p("v_pk_add_f32 %s, %s, %s" % (vr(c, 2), vr(c, 2), vr(c + 2, 2)))
        for h in range(2):
            x, c = S(0, h), S(1, h)
            p("v_pk_add_f32 %s, %s, %s" % (vr(x, 2), vr(x, 2), vr(c, 2)))
        for h in range(2):
            x = S(0, h)
            p("v_fma_f32 v%d, v%d, v%d, v%d" % (vL + h, vL + h, al[h], x))
        for h in range(2):
            x = S(0, h)
            p("v_add_f32 v%d, v%d, v%d" % (vL + h, vL + h, x + 1))
        if b == NB - 1:
            p("s_cbranch_vccz L_nml")
            p("v_permlane32_swap_b32 v%d, v%d" % (vL, vL + 1))
            p("v_permlane32_swap_b32 v%d, v%d" % (vM, vM + 1))
            p("v_add_f32 v%d, v%d, v%d" % (vL, vL, vL + 1))
            p("v_lshrrev_b32 v%d, 3, v%d" % (vT + 2, vAW))
            p("v_mov_b32 v%d, v%d" % (vL + 1, vL))
            p("v_and_b32 v%d, 0x600, v%d" % (vT + 2, vT + 2))
            p("v_permlane16_swap_b32 v%d, v%d" % (vL, vL + 1))
            p("v_lshl_add_u32 v%d, v%d, 3, v%d" % (vT + 3, vLane, vT + 2))
            p("v_add_f32 v%d, v%d, v%d" % (vM + 1, vL, vL + 1))
            p("ds_write_b64 v%d, %s offset:49152" % (vT + 3, vr(vM, 2)))
            p("v_and_b32 v%d, 0x678, v%d" % (vT + 3, vT + 3))
            p("s_waitcnt vmcnt(0)")
            p("L_nml:")
        p("s_waitcnt vmcnt(%d)" % (16 * (NB - 1) + 8))
        if b < NB - 1:
            p("s_cbranch_vccz L_wv%d" % b)
            p("s_waitcnt vmcnt(%d)" % (16 * (NB - 1 - b)))
            p("L_wv%d:" % b)

        stamp()

        def perms(w):
            base = vVT + (w & 1) * 8
            for par, sel in ((0, sSelLo), (1, sSelHi)):
                for u in range(4):
                    p("v_perm_b32 v%d, v%d, v%d, s%d" % (base + par * 4 + u, Vb(b, 2 * u + 1) + w, Vb(b, 2 * u) + w, sel))

        def mf(w):
            base = vVT + (w & 1) * 8
            for par in range(2):
                for h in range(2):
                    j = 2 * w + par
                    p("v_mfma_f32_16x16x32_bf16 %s, %s, %s, %s" % (vr(O(h, j), 4), vr(base + par * 4, 4), vr(vP + 4 * h, 4), vr(O(h, j), 4)))
        perms(0)
        perms(1)
        mf(0)
        perms(2)
        mf(1)
        perms(3)
        mf(2)
        p("s_cbranch_vccnz L_nv%d" % b)
        load_v(b)
        p("L_nv%d:" % b)
        mf(3)

    nloop = NT // NB
    end_off = 8192 * NW * NT
    p("L_loop:")
    p("s_cmp_ge_u32 s%d, %d" % (sOff, end_off))
    p("s_cselect_b64 vcc, -1, 0")
    for b in range(NB):
        tile(b)
    p("s_cbranch_vccz L_loop")

    if diag:
        p("s_memrealtime s[42:43]")
    A1, A2, A3 = vT + 4, vT + 5, vT + 6
    for j in range(8):
        p("ds_write2st64_b64 v%d, %s, %s offset0:%d offset1:%d" % (vAW, vr(O(1, j), 2), vr(O(1, j) + 2, 2), 32 + j, 64 + j))
    for j in range(8):
        p("ds_write_b64 v%d, %s offset:%d" % (vAW, vr(O(0, j) + 2, 2), 512 * j))
    p("v_xor_b32 v%d, 0x1000, v%d" % (A1, vAW))
    p("v_xor_b32 v%d, 0x2000, v%d" % (A2, vAW))
    p("v_xor_b32 v%d, 0x3000, v%d" % (A3, vAW))
    M0 = vT + 3
    p("v_xor_b32 v%d, 0x200, v%d" % (vS, M0))
    p("v_xor_b32 v%d, 0x500, v%d" % (vS + 1, M0))
    p("v_xor_b32 v%d, 0x700, v%d" % (vS + 2, M0))
    p("s_waitcnt lgkmcnt(0)")
    p("s_barrier")
    ML = vS + 4
    p("ds_read_b64 %s, v%d offset:49152" % (vr(ML, 2), M0))
    for x in range(3):
        p("ds_read_b64 %s, v%d offset:49152" % (vr(ML + 2 + 2 * x, 2), vS + x))
    X = lambda x, j: vV + (x - 1) * 16 + 2 * j if NB >= 2 else (vV + (x - 1) * 16 + 2 * j if x < 3 else vVT + 2 * j)
    for x, A in ((1, A1), (2, A2), (3, A3)):
        for j in range(8):
            p("ds_read_b64 %s, v%d offset:%d" % (vr(X(x, j), 2), A, 16384 * (x - 1) + 512 * j))
            if x == 2 and j == 2:
                p("s_waitcnt lgkmcnt(11)")
                G = vS + 12
                p("v_max3_f32 v%d, v%d, v%d, v%d" % (G, ML, ML + 2, ML + 4))
                p("v_max_f32 v%d, v%d, v%d" % (G, G, ML + 6))
                for w in range(4):
                    p("v_sub_f32 v%d, v%d, v%d" % (ML + 2 * w, ML + 2 * w, G))
                for w in range(4):
                    p("v_mul_f32 v%d, s%d, v%d" % (ML + 2 * w, sC, ML + 2 * w))
                for w in range(4):
                    p("v_exp_f32 v%d, v%d" % (ML + 2 * w, ML + 2 * w))
    G = vS + 12
    p("v_mul_f32 v%d, v%d, v%d" % (G, ML, ML + 1))
    for w in range(1, 4):
        p("v_fma_f32 v%d, v%d, v%d, v%d" % (G, ML + 2 * w, ML + 2 * w + 1, G))
    p("v_rcp_f32 v%d, v%d" % (G, G))
    for w in range(4):
        p("v_mul_f32 v%d, v%d, v%d" % (ML + 2 * w, ML + 2 * w, G))
    for j in range(8):
        p("v_pk_mul_f32 %s, %s, %s op_sel_hi:[1,0]" % (vr(O(0, j), 2), vr(O(0, j), 2), vr(ML, 2)))
    for x in range(1, 4):
        p("s_waitcnt lgkmcnt(%d)" % min(15, 8 * (3 - x)))
        for j in range(8):
            p("v_pk_fma_f32 %s, %s, %s, %s op_sel_hi:[1,0,1]" % (vr(O(0, j), 2), vr(X(x, j), 2), vr(ML + 2 * x, 2), vr(O(0, j), 2)))
    for r in range(2):
        for u in range(4):
            p("v_cvt_pk_bf16_f32 v%d, v%d, v%d" % (vP + 4 * r + u, O(0, 2 * u) + r, O(0, 2 * u + 1) + r))
        p("buffer_store_dwordx4 %s, v%d, %s, 0 offen offset:%d %s" % (vr(vP + 4 * r, 4), vAO, srd(sO), 16 * r, ofl))
    if diag:
        p("s_waitcnt vmcnt(0)")
        p("s_memrealtime s[44:45]")
        p("s_getreg_b32 s46, hwreg(HW_REG_XCC_ID)")
        p("s_waitcnt lgkmcnt(0)")
        p("s_mov_b32 s47, s48")
        p("s_mov_b32 s36, s60")
        p("s_mov_b32 s37, s61")
        p("s_mov_b32 s38, 32768")
        p("s_mov_b32 s39, 0x20000")
        for k in range(8):
            p("v_mov_b32 v%d, s%d" % (16 + k, 40 + k))
        p("s_lshl_b32 s33, s2, 2")
        p("s_add_u32 s33, s33, s%d" % sW)
        if a.trace:
            p("s_mov_b32 s38, 0x100000")
            p("s_lshl_b32 s54, s33, 8")
            p("s_add_u32 s54, s54, 0x80000")
            p("v_lshlrev_b32 v12, 2, v%d" % vLane)
            p("buffer_store_dword v%d, v12, s[36:39], s54 offen" % vTr)
        p("s_lshl_b32 s33, s33, 5")
        p("v_mov_b32 v12, s33")
        p("v_cmp_eq_u32 vcc, 0, v%d" % vLane)
        p("s_and_saveexec_b64 s[50:51], vcc")
        p("buffer_store_dwordx4 v[16:19], v12, s[36:39], 0 offen")
        p("buffer_store_dwordx4 v[20:23], v12, s[36:39], 0 offen offset:16")
    p("L_end:")
    p("s_endpgm")
    p.fix_hazards(a.verbose)
    n = nloop - 1
    trips = {"L_loop": [True] * n + [False], "L_nml": [True] * n + [False]}
    for b in range(NB):
        trips["L_nk%d" % b] = [False] * n + [True]
        trips["L_nv%d" % b] = [False] * n + [True]
        trips["L_wk%d" % b] = [True] * n + [False]
        trips["L_wv%d" % b] = [True] * n + [False]
    if diag:
        trips["L_nostamp"] = [False] + [True] * n
    p.check_waits(trips)
    return HEADER.format(threads=64 * NW, lds=a.lds) + p.text() + FOOTER.format(nfv=acc_off + nA, nfs=64, acc=acc_off)


if __name__ == "__main__":
    ap = argparse.ArgumentParser()
    ap.add_argument("-o", default="out.s")
    ap.add_argument("--nb", type=int, default=1)
    ap.add_argument("--kfl", default="nt")
    ap.add_argument("--vfl", default="nt")
    ap.add_argument("--qfl", default="")
    ap.add_argument("--ofl", default="")
    ap.add_argument("--perm", type=int, default=1)
    ap.add_argument("--pre", type=int, default=0)
    ap.add_argument("--lds", type=int, default=84 * 1024)
    ap.add_argument("--diag", action="store_true")
    ap.add_argument("--verbose", action="store_true")
    ap.add_argument("--trace", action="store_true")
    a = ap.parse_args()
    open(a.o, "w").write(gen(a))
```

```python
import math
import argparse
from asmlib import Prog
from gen1 import HEADER, FOOTER, f32, vr, ar


def gen(a):
    diag = a.diag
    kfl, vfl, qfl, ofl = a.kfl, a.vfl, a.qfl, a.ofl
    NW = 4
    NT = 16
    LA = a.la
    NBUF = 1 + LA
    p = Prog()
    C = 128 ** -0.5 * math.log2(math.e)
    sK, sV, sQ, sO = 12, 16, 20, 24
    sC, sSelLo, sSelHi = 28, 29, 30
    sOffK, sOffV = 31, 32
    sW = 34
    vK0, vK1, vV0, vV1, vQ0, vQ1 = 1, 2, 3, 4, 5, 6
    vLane = 7
    vM, vL, vT, vNM, vAl = 8, 10, 12, 20, 22
    vAW, vAO = 26, 27
    vS, vP = 28, 44
    vVT = 52
    nVT = 32
    vO = vVT + nVT
    vV = vO + 64
    nV = vV + NBUF * 32
    vTr = nV
    if a.trace:
        nV += 2
    assert nV <= 256
    aQ, aK = 0, 32
    nA = aK + NBUF * 32
    acc_off = (nV + 3) // 4 * 4
    S = lambda t, h: vS + (t * 2 + h) * 4
    O = lambda h, j: vO + (h * 8 + j) * 4
    Kb = lambda b, t, i: aK + b * 32 + (t * 4 + i) * 4
    Vb = lambda b, e: vV + b * 32 + e * 4
    Qf = lambda h, i: aQ + (h * 4 + i) * 4
    srd = lambda s: "s[%d:%d]" % (s, s + 3)
    STEP = 8192 * NW

    fifo = []

    def wait_for(tag):
        idx = [i for i, x in enumerate(fifo) if x == tag]
        if not idx:
            return
        n = len(fifo) - 1 - idx[-1]
        p("s_waitcnt vmcnt(%d)" % n)
        del fifo[:idx[-1] + 1]

    def stamp():
        if a.trace:
            p("s_memrealtime s[52:53]")
            p("v_cmp_eq_u32 s[54:55], s56, v%d" % vLane)
            p("s_add_u32 s56, s56, 1")
            p("s_waitcnt lgkmcnt(0)")
            p("v_mov_b32 v%d, s52" % (vTr + 1))
            p("v_cndmask_b32 v%d, v%d, v%d, s[54:55]" % (vTr, vTr, vTr + 1))

    p("s_load_dwordx8 s[4:11], s[0:1], 0")
    p("s_cmp_ge_u32 s2, 256")
    p("s_cbranch_scc1 L_end")
    if diag:
        p("s_memrealtime s[40:41]")
        p("s_load_dwordx2 s[60:61], s[0:1], 40")
    if a.perm:
        p("s_and_b32 s33, s2, 7")
        p("s_lshr_b32 s35, s2, 3")
        p("s_lshl_b32 s33, s33, 5")
        p("s_or_b32 s33, s33, s35")
    else:
        p("s_mov_b32 s33, s2")
    p("s_lshl_b32 s35, s33, 19")
    p("s_lshl_b32 s33, s33, 13")
    p("v_lshrrev_b32 v14, 6, v0")
    p("v_and_b32 v%d, 63, v0" % vLane)
    p("v_lshlrev_b32 v15, 13, v14")
    p("v_and_b32 v16, 3, v0")
    p("v_bfe_u32 v17, v0, 2, 2")
    p("v_lshl_add_u32 v16, v16, 2, v17")
    p("v_lshl_add_u32 v16, v16, 8, v15")
    p("v_and_b32 v17, 0x30, v0")
    p("v_add_u32 v%d, v16, v17" % vK0)
    p("v_add_u32 v%d, 4096, v%d" % (vK1, vK0))
    p("v_and_b32 v16, 15, v0")
    p("v_lshl_add_u32 v16, v16, 8, v17")
    p("v_bfe_u32 v18, v0, 7, 1")
    p("v_lshl_add_u32 v%d, v18, 12, v16" % vQ0)
    p("v_xor_b32 v%d, 4096, v%d" % (vQ1, vQ0))
    p("v_bfe_u32 v18, v0, 6, 1")
    p("v_lshlrev_b32 v19, 1, v18")
    p("v_xor_b32 v19, v19, v%d" % vLane)
    p("v_lshl_add_u32 v%d, v19, 4, v15" % vV0)
    p("v_add_u32 v%d, 4096, v%d" % (vV1, vV0))
    for s, size in ((sK, 524288), (sV, 524288), (sQ, 8192), (sO, 8192)):
        p("s_mov_b32 s%d, %d" % (s + 2, size))
        p("s_mov_b32 s%d, 0x20000" % (s + 3))
    p("s_mov_b32 s%d, 0" % sOffK)
    p("s_mov_b32 s%d, 0" % sOffV)
    if a.trace:
        p("s_mov_b32 s56, 0")
    p("s_waitcnt lgkmcnt(0)")

    def mk(s, lo, sh):
        p("s_add_u32 s%d, s%d, s%d" % (s, lo, sh))
        p("s_addc_u32 s%d, s%d, 0" % (s + 1, lo + 1))

    static = [False]

    def load_k(b, tile, ts=(0, 1), step=True):
        if static[0]:
            p("s_mov_b32 s%d, %d" % (sOffK, STEP * tile))
            step = False
        for t in ts:
            for i in range(4):
                p("buffer_load_dwordx4 %s, v%d, %s, s%d offen offset:%d %s" % (ar(Kb(b, t, i), 4), vK0 + t, srd(sK), sOffK, 64 * i, kfl))
                fifo.append(("K", tile, t))
        if step:
            p("s_add_u32 s%d, s%d, %d" % (sOffK, sOffK, STEP))

    def load_v(b, tile, ts=(0, 1), step=True):
        if static[0]:
            p("s_mov_b32 s%d, %d" % (sOffV, STEP * tile))
            step = False
        for t in ts:
            for r in range(4):
                e = 4 * t + r
                p("buffer_load_dwordx4 %s, v%d, %s, s%d offen offset:%d %s" % (vr(Vb(b, e), 4), vV0 + t, srd(sV), sOffV, 1024 * r, vfl))
                fifo.append(("V", tile, t))
        if step:
            p("s_add_u32 s%d, s%d, %d" % (sOffV, sOffV, STEP))

    def load_q():
        mk(sQ, 4, 33)
        for h in range(2):
            for i in range(4):
                p("buffer_load_dwordx4 %s, v%d, %s, 0 offen offset:%d %s" % (ar(Qf(h, i), 4), vQ0 + h, srd(sQ), 64 * i, qfl))
                fifo.append(("Q",))

    if a.q == "first":
        load_q()
    mk(sK, 6, 35)
    if a.mode == "H":
        mk(sV, 8, 35)
        load_k(0, 0, (0,), False)
        load_v(0, 0, (0,), False)
        load_k(0, 0, (1,))
        load_v(0, 0, (1,))
    else:
        load_k(0, 0)
        if a.q == "mid":
            load_q()
        mk(sV, 8, 35)
        load_v(0, 0)
    if a.q == "last" or (a.q == "mid" and a.mode == "H"):
        load_q()
    mk(sO, 10, 33)
    p("s_mov_b32 s%d, %s" % (sC, f32(C)))
    p("s_mov_b32 s%d, 0x05040100" % sSelLo)
    p("s_mov_b32 s%d, 0x07060302" % sSelHi)
    p("v_lshlrev_b32 v15, 12, v14")
    p("v_lshl_add_u32 v%d, v%d, 3, v15" % (vAW, vLane))
    p("v_and_b32 v16, 0x1f00, v%d" % vQ0)
    p("v_lshlrev_b32 v17, 2, v17")
    p("v_lshl_add_u32 v17, v18, 5, v17")
    p("v_add_u32 v%d, v16, v17" % vAO)
    if diag:
        p("v_readfirstlane_b32 s%d, v14" % sW)
    for h in range(2):
        p("v_mov_b32 v%d, 0xff800000" % (vM + h))
        p("v_mov_b32 v%d, 0" % (vL + h))
    for i in range(0, 64, 2):
        p("v_pk_mul_f32 %s, %s, 0 op_sel_hi:[1,0]" % (vr(vO + i, 2), vr(vL, 2)))
    wait_for(("Q",))
    if a.mode == "H":
        fifo[:] = [("K", 0, 0)] * 4 + [("V", 0, 0)] * 4 + [("K", 0, 1)] * 4 + [("V", 0, 1)] * 4
    else:
        fifo[:] = [("K", 0, 0)] * 4 + [("K", 0, 1)] * 4 + [("V", 0, 0)] * 4 + [("V", 0, 1)] * 4
    if diag:
        p("s_memrealtime s[48:49]")

    al = (vAl, vAl + 2)

    def qk(b, t):
        for i in range(4):
            for h in range(2):
                p("v_mfma_f32_16x16x32_bf16 %s, %s, %s, %s" % (
                    vr(S(t, h), 4), ar(Kb(b, t, i), 4), ar(Qf(h, i), 4), "0" if i == 0 else vr(S(t, h), 4)))

    def qk2(b):
        for i in range(4):
            for t in range(2):
                for h in range(2):
                    p("v_mfma_f32_16x16x32_bf16 %s, %s, %s, %s" % (
                        vr(S(t, h), 4), ar(Kb(b, t, i), 4), ar(Qf(h, i), 4), "0" if i == 0 else vr(S(t, h), 4)))

    def softmax():
        for h in range(2):
            x, c = S(0, h), S(1, h)
            p("v_max3_f32 v%d, v%d, v%d, v%d" % (vT + h, x, x + 1, x + 2))
            p("v_max3_f32 v%d, v%d, v%d, v%d" % (vT + 2 + h, x + 3, c, c + 1))
            p("v_max3_f32 v%d, v%d, v%d, v%d" % (vT + h, c + 2, c + 3, vT + h))
            p("v_max3_f32 v%d, v%d, v%d, v%d" % (vT + h, vT + h, vT + 2 + h, vM + h))
        p("v_permlane32_swap_b32 v%d, v%d" % (vT, vT + 1))
        p("v_max_f32 v%d, v%d, v%d" % (vT, vT, vT + 1))
        p("v_mov_b32 v%d, v%d" % (vT + 1, vT))
        p("v_permlane16_swap_b32 v%d, v%d" % (vT, vT + 1))
        p("v_max_f32 v%d, v%d, v%d" % (vT, vT, vT + 1))
        p("v_mov_b32 v%d, v%d" % (vT + 1, vT))
        p("v_permlane32_swap_b32 v%d, v%d" % (vT, vT + 1))
        for h in range(2):
            p("v_mul_f32 v%d, s%d, v%d" % (vNM + h, sC, vT + h))
        for h in range(2):
            p("v_fma_f32 v%d, v%d, s%d, -v%d" % (al[h], vM + h, sC, vNM + h))
        for h in range(2):
            p("v_mov_b32 v%d, v%d" % (vM + h, vT + h))
        for h in range(2):
            p("v_exp_f32 v%d, v%d" % (al[h], al[h]))
        for h in range(2):
            for t in range(2):
                for r in range(4):
                    x = S(t, h) + r
                    p("v_fma_f32 v%d, v%d, s%d, -v%d" % (x, x, sC, vNM + h))
        for h in range(2):
            for t in range(2):
                for r in range(4):
                    x = S(t, h) + r
                    p("v_exp_f32 v%d, v%d" % (x, x))
        for h in range(2):
            for k in range(0, 32, 2):
                x = O(h, 0) + k
                p("v_pk_mul_f32 %s, %s, %s op_sel_hi:[1,0]" % (vr(x, 2), vr(x, 2), vr(al[h], 2)))
        for h in range(2):
            x, c = S(0, h), S(1, h)
            p("v_cvt_pk_bf16_f32 v%d, v%d, v%d" % (vP + 4 * h, x, x + 1))
            p("v_cvt_pk_bf16_f32 v%d, v%d, v%d" % (vP + 4 * h + 1, x + 2, x + 3))
            p("v_cvt_pk_bf16_f32 v%d, v%d, v%d" % (vP + 4 * h + 2, c, c + 1))
            p("v_cvt_pk_bf16_f32 v%d, v%d, v%d" % (vP + 4 * h + 3, c + 2, c + 3))
        for h in range(2):
            x, c = S(0, h), S(1, h)
            p("v_pk_add_f32 %s, %s, %s" % (vr(x, 2), vr(x, 2), vr(x + 2, 2)))
            p("v_pk_add_f32 %s, %s, %s" % (vr(c, 2), vr(c, 2), vr(c + 2, 2)))
        for h in range(2):
            x, c = S(0, h), S(1, h)
            p("v_pk_add_f32 %s, %s, %s" % (vr(x, 2), vr(x, 2), vr(c, 2)))
        for h in range(2):
            x = S(0, h)
            p("v_fma_f32 v%d, v%d, v%d, v%d" % (vL + h, vL + h, al[h], x))
        for h in range(2):
            x = S(0, h)
            p("v_add_f32 v%d, v%d, v%d" % (vL + h, vL + h, x + 1))

    def publish_ml():
        p("v_permlane32_swap_b32 v%d, v%d" % (vL, vL + 1))
        p("v_permlane32_swap_b32 v%d, v%d" % (vM, vM + 1))
        p("v_add_f32 v%d, v%d, v%d" % (vL, vL, vL + 1))
        p("v_lshrrev_b32 v%d, 3, v%d" % (vT + 2, vAW))
        p("v_mov_b32 v%d, v%d" % (vL + 1, vL))
        p("v_and_b32 v%d, 0x600, v%d" % (vT + 2, vT + 2))
        p("v_permlane16_swap_b32 v%d, v%d" % (vL, vL + 1))
        p("v_lshl_add_u32 v%d, v%d, 3, v%d" % (vT + 3, vLane, vT + 2))
        p("v_add_f32 v%d, v%d, v%d" % (vM + 1, vL, vL + 1))
        p("ds_write_b64 v%d, %s offset:49152" % (vT + 3, vr(vM, 2)))
        p("v_and_b32 v%d, 0x678, v%d" % (vT + 3, vT + 3))

    VT = lambda j, u: vVT + j * 4 + u

    def perms(b, js, us=(0, 1, 2, 3)):
        for j in js:
            for u in us:
                p("v_perm_b32 v%d, v%d, v%d, s%d" % (VT(j, u), Vb(b, 2 * u + 1) + j // 2, Vb(b, 2 * u) + j // 2, sSelHi if j & 1 else sSelLo))

    def mf(js, hs=(0, 1)):
        for j in js:
            for h in hs:
                p("v_mfma_f32_16x16x32_bf16 %s, %s, %s, %s" % (vr(O(h, j), 4), vr(VT(j, 0), 4), vr(vP + 4 * h, 4), vr(O(h, j), 4)))

    def tile(t, b, nxt, last=False):
        if a.mode == "H":
            wait_for(("K", t, 0))
            wait_for(("V", t, 0))
            stamp()
            qk(b, 0)
            perms(b, range(8), (0, 1))
            for tt, bb in nxt:
                load_k(bb, tt, (0,), False)
                load_v(bb, tt, (0,), False)
            wait_for(("K", t, 1))
            if not last:
                wait_for(("V", t, 1))
                stamp()
                qk(b, 1)
                perms(b, range(8), (2, 3))
                for tt, bb in nxt:
                    load_k(bb, tt, (1,))
                    load_v(bb, tt, (1,))
                softmax()
                mf(range(8))
            else:
                qk(b, 1)
                softmax()
                publish_ml()
                wait_for(("V", t, 1))
                stamp()
                perms(b, range(8), (2, 3))
                tail_pv()
            return
        wait_for(("K", t, 1))
        stamp()
        qk2(b)
        if a.mode == "A":
            for tt, bb in nxt:
                load_k(bb, tt)
        softmax()
        if last:
            publish_ml()
        wait_for(("V", t, 1))
        stamp()
        if a.mode == "B":
            for tt, bb in nxt:
                load_k(bb, tt)
                if bb != b:
                    load_v(bb, tt)
        if last:
            perms(b, range(8))
            tail_pv()
            return
        perms(b, range(4))
        mf(range(2))
        perms(b, range(4, 8))
        for tt, bb in nxt:
            if a.mode == "A" or bb == b:
                load_v(bb, tt)
        mf(range(2, 8))

    def tail_pv():
        mf(range(8), (1,))
        for j in range(8):
            mf((j,), (0,))
            p("ds_write2st64_b64 v%d, %s, %s offset0:%d offset1:%d" % (vAW, vr(O(1, j), 2), vr(O(1, j) + 2, 2), 32 + j, 64 + j))
        if diag:
            p("s_memrealtime s[42:43]")
        for j in range(8):
            p("ds_write_b64 v%d, %s offset:%d" % (vAW, vr(O(0, j) + 2, 2), 512 * j))

    nuni = NT - 1 - 2 * LA if LA else NT - 1
    if LA == 0:
        plan = [(NT - 1, 0, [])]
    elif LA == 1:
        plan = [(13, 0, [(14, 0), (15, 1)]), (14, 0, []), (15, 1, [])]
        if a.mode == "B":
            plan = [(13, 0, [(14, 1), (15, 0)]), (14, 1, []), (15, 0, [])]
    elif LA == 2:
        plan = [(11, 0, [(12, 0), (13, 1)]), (12, 0, [(14, 0)]), (13, 1, [(15, 1)]), (14, 0, []), (15, 1, [])]
        if a.mode == "B":
            plan = [(11, 0, [(12, 1), (13, 0)]), (12, 1, [(14, 1)]), (13, 0, [(15, 0)]), (14, 1, []), (15, 0, [])]
        if a.deep:
            plan = [(12, 0, [(13, 0), (14, 1), (15, 2)]), (13, 0, []), (14, 1, []), (15, 2, [])]
            if a.mode == "B":
                plan = [(12, 0, [(13, 1), (14, 2), (15, 0)]), (13, 1, []), (14, 2, []), (15, 0, [])]
    nuni = plan[0][0]
    p("L_loop:")
    f0 = list(fifo)
    tile(0, 0, [(1, 0)])
    assert [(x[0],) + x[2:] for x in fifo] == [(x[0],) + x[2:] for x in f0], (fifo, f0)
    fifo[:] = [(x[0], nuni) + x[2:] for x in fifo]
    p("s_cmp_le_u32 s%d, %d" % (sOffV, STEP * nuni))
    p("s_cbranch_scc1 L_loop")
    static[0] = True
    for i, (t, b, nxt) in enumerate(plan):
        tile(t, b, nxt, last=(i == len(plan) - 1))

    A1, A2, A3 = vT + 4, vT + 5, vT + 6
    p("v_xor_b32 v%d, 0x1000, v%d" % (A1, vAW))
    p("v_xor_b32 v%d, 0x2000, v%d" % (A2, vAW))
    p("v_xor_b32 v%d, 0x3000, v%d" % (A3, vAW))
    M0 = vT + 3
    p("v_xor_b32 v%d, 0x200, v%d" % (vS, M0))
    p("v_xor_b32 v%d, 0x500, v%d" % (vS + 1, M0))
    p("v_xor_b32 v%d, 0x700, v%d" % (vS + 2, M0))
    p("s_waitcnt lgkmcnt(0)")
    p("s_barrier")
    ML = vS + 4
    p("ds_read_b64 %s, v%d offset:49152" % (vr(ML, 2), M0))
    for x in range(3):
        p("ds_read_b64 %s, v%d offset:49152" % (vr(ML + 2 + 2 * x, 2), vS + x))
    X = lambda x, j: vV + (x - 1) * 16 + 2 * j if x < 3 else vVT + 2 * j
    G = vS + 12
    for x, A in ((1, A1), (2, A2), (3, A3)):
        for j in range(8):
            p("ds_read_b64 %s, v%d offset:%d" % (vr(X(x, j), 2), A, 16384 * (x - 1) + 512 * j))
            if x == 2 and j == 2:
                p("s_waitcnt lgkmcnt(11)")
                p("v_max3_f32 v%d, v%d, v%d, v%d" % (G, ML, ML + 2, ML + 4))
                p("v_max_f32 v%d, v%d, v%d" % (G, G, ML + 6))
                for w in range(4):
                    p("v_sub_f32 v%d, v%d, v%d" % (ML + 2 * w, ML + 2 * w, G))
                for w in range(4):
                    p("v_mul_f32 v%d, s%d, v%d" % (ML + 2 * w, sC, ML + 2 * w))
                for w in range(4):
                    p("v_exp_f32 v%d, v%d" % (ML + 2 * w, ML + 2 * w))
    p("v_mul_f32 v%d, v%d, v%d" % (G, ML, ML + 1))
    for w in range(1, 4):
        p("v_fma_f32 v%d, v%d, v%d, v%d" % (G, ML + 2 * w, ML + 2 * w + 1, G))
    p("v_rcp_f32 v%d, v%d" % (G, G))
    for w in range(4):
        p("v_mul_f32 v%d, v%d, v%d" % (ML + 2 * w, ML + 2 * w, G))
    for j in range(8):
        p("v_pk_mul_f32 %s, %s, %s op_sel_hi:[1,0]" % (vr(O(0, j), 2), vr(O(0, j), 2), vr(ML, 2)))
    for x in range(1, 4):
        p("s_waitcnt lgkmcnt(%d)" % min(15, 8 * (3 - x)))
        for j in range(8):
            p("v_pk_fma_f32 %s, %s, %s, %s op_sel_hi:[1,0,1]" % (vr(O(0, j), 2), vr(X(x, j), 2), vr(ML + 2 * x, 2), vr(O(0, j), 2)))
    for r in range(2):
        for u in range(4):
            p("v_cvt_pk_bf16_f32 v%d, v%d, v%d" % (vP + 4 * r + u, O(0, 2 * u) + r, O(0, 2 * u + 1) + r))
        p("buffer_store_dwordx4 %s, v%d, %s, 0 offen offset:%d %s" % (vr(vP + 4 * r, 4), vAO, srd(sO), 16 * r, ofl))
    if diag:
        p("s_waitcnt vmcnt(0)")
        p("s_memrealtime s[44:45]")
        p("s_getreg_b32 s46, hwreg(HW_REG_XCC_ID)")
        p("s_waitcnt lgkmcnt(0)")
        p("s_mov_b32 s47, s48")
        p("s_mov_b32 s36, s60")
        p("s_mov_b32 s37, s61")
        p("s_mov_b32 s38, 32768")
        p("s_mov_b32 s39, 0x20000")
        for k in range(8):
            p("v_mov_b32 v%d, s%d" % (16 + k, 40 + k))
        p("s_lshl_b32 s33, s2, 2")
        p("s_add_u32 s33, s33, s%d" % sW)
        if a.trace:
            p("s_mov_b32 s38, 0x100000")
            p("s_lshl_b32 s54, s33, 8")
            p("s_add_u32 s54, s54, 0x80000")
            p("v_lshlrev_b32 v12, 2, v%d" % vLane)
            p("buffer_store_dword v%d, v12, s[36:39], s54 offen" % vTr)
        p("s_lshl_b32 s33, s33, 5")
        p("v_mov_b32 v12, s33")
        p("v_cmp_eq_u32 vcc, 0, v%d" % vLane)
        p("s_and_saveexec_b64 s[50:51], vcc")
        p("buffer_store_dwordx4 v[16:19], v12, s[36:39], 0 offen")
        p("buffer_store_dwordx4 v[20:23], v12, s[36:39], 0 offen offset:16")
    p("L_end:")
    p("s_endpgm")
    p.fix_hazards(a.verbose)
    p.check_waits({"L_loop": [True] * (nuni - 1) + [False]})
    return HEADER.format(threads=64 * NW, lds=a.lds) + p.text() + FOOTER.format(nfv=acc_off + nA, nfs=64, acc=acc_off)


def args(argv=None):
    ap = argparse.ArgumentParser()
    ap.add_argument("-o", default="out.s")
    ap.add_argument("--la", type=int, default=0)
    ap.add_argument("--mode", default="B")
    ap.add_argument("--q", default="mid")
    ap.add_argument("--kfl", default="nt")
    ap.add_argument("--vfl", default="nt")
    ap.add_argument("--qfl", default="")
    ap.add_argument("--ofl", default="")
    ap.add_argument("--perm", type=int, default=1)
    ap.add_argument("--lds", type=int, default=84 * 1024)
    ap.add_argument("--diag", action="store_true")
    ap.add_argument("--trace", action="store_true")
    ap.add_argument("--verbose", action="store_true")
    ap.add_argument("--order2", action="store_true")
    ap.add_argument("--deep", action="store_true")
    return ap.parse_args(argv)


if __name__ == "__main__":
    a = args()
    open(a.o, "w").write(gen(a))
```

```python
import re

TRANS = ("v_exp_f32", "v_log_f32", "v_rcp_f32", "v_rsq_f32", "v_sqrt_f32", "v_sin_f32", "v_cos_f32",
         "v_rcp_iflag_f32")


def regs_of(tok):
    tok = tok.strip()
    neg = tok.lstrip("-")
    if neg.startswith("abs(") and neg.endswith(")"):
        neg = neg[4:-1]
    if neg.startswith("|") and neg.endswith("|"):
        neg = neg[1:-1]
    tok = neg
    m = re.fullmatch(r"([vas])(\d+)", tok)
    if m:
        return [m.group(1) + m.group(2)]
    m = re.fullmatch(r"([vas])\[(\d+):(\d+)\]", tok)
    if m:
        return [m.group(1) + str(i) for i in range(int(m.group(2)), int(m.group(3)) + 1)]
    if tok in ("vcc", "vcc_lo", "vcc_hi"):
        return ["vcc"]
    if tok in ("exec", "exec_lo", "exec_hi"):
        return ["exec"]
    if tok == "m0":
        return ["m0"]
    return []


class Ins:
    __slots__ = ("text", "op", "ops", "mods", "w", "r", "kind", "label", "target", "srcC", "srcAB",
                 "passes", "store_data", "nops", "ldst")

    def __init__(self, text):
        self.text = text
        self.label = None
        self.target = None
        self.w, self.r = set(), set()
        self.srcC, self.srcAB = set(), set()
        self.passes = 0
        self.store_data = set()
        self.ldst = set()
        t = text.split(";")[0].strip()
        if t.endswith(":"):
            self.kind = "label"
            self.label = t[:-1]
            self.op = ""
            self.ops = []
            self.mods = ""
            return
        if t == "" or t.startswith("."):
            self.kind = "dir"
            self.op = ""
            self.ops = []
            self.mods = ""
            return
        parts = t.split(None, 1)
        self.op = op = parts[0]
        rest = parts[1] if len(parts) > 1 else ""
        ops, cur, depth = [], "", 0
        for ch in rest:
            if ch in "[(":
                depth += 1
            if ch in "])":
                depth -= 1
            if ch == "," and depth == 0:
                ops.append(cur.strip())
                cur = ""
            else:
                cur += ch
        if cur.strip():
            ops.append(cur.strip())
        mods = ""
        if ops:
            last = ops[-1].split(None, 1)
            if len(last) > 1 and not op.startswith("s_waitcnt"):
                ops[-1] = last[0]
                mods = last[1]
        self.ops, self.mods = ops, mods
        R = lambda i: set(regs_of(ops[i])) if i < len(ops) else set()
        allr = lambda a: set().union(*[R(i) for i in range(a, len(ops))]) if len(ops) > a else set()
        base = re.sub(r"_(e32|e64|dpp|sdwa)$", "", op)
        if op.startswith("v_mfma"):
            self.kind = "mfma"
            self.w = R(0)
            self.srcAB = R(1) | R(2)
            self.srcC = R(3)
            self.r = self.srcAB | self.srcC
            self.passes = 4 if "16x16" in op else 8
        elif op.startswith("v_"):
            self.kind = "valu"
            if base.startswith("v_permlane") and "swap" in base:
                self.w = R(0) | R(1)
                self.r = R(0) | R(1)
            elif base.startswith("v_cmp"):
                self.w = R(0)
                self.r = allr(1)
                if base.startswith("v_cmpx"):
                    self.w |= {"exec"}
            elif base in ("v_add_co_u32", "v_sub_co_u32", "v_addc_co_u32", "v_subb_co_u32"):
                self.w = R(0) | R(1)
                self.r = allr(2)
            elif base in ("v_fmac_f32", "v_pk_fmac_f16", "v_writelane_b32"):
                self.w = R(0)
                self.r = allr(0)
            else:
                self.w = R(0)
                self.r = allr(1)
                if "dpp" in op or "row_" in mods or "quad_perm" in mods:
                    self.r |= R(0)
            self.r |= {"exec"}
        elif op.startswith(("buffer_load", "global_load")):
            self.kind = "vmem"
            if " lds" in " " + mods or "_lds_" in op:
                self.r = allr(0) | {"m0"}
                self.ldst = {"LDS"}
            else:
                self.w = R(0)
                self.ldst = R(0)
                self.r = allr(1)
        elif op.startswith(("buffer_store", "global_store", "buffer_atomic", "global_atomic")):
            self.kind = "vmem"
            self.r = allr(0)
            if op.endswith(("x3", "x4")):
                self.store_data = R(0) if op.startswith("buffer") else R(1)
            if "atomic" in op and "sc0" in mods:
                self.w = R(0)
                self.ldst = R(0)
        elif op.startswith(("buffer_wbl2", "buffer_inv")):
            self.kind = "vmem"
        elif op.startswith("ds_"):
            self.kind = "ds"
            if op.startswith(("ds_read", "ds_bpermute", "ds_permute", "ds_swizzle")) or "rtn" in op:
                self.w = R(0)
                self.ldst = R(0)
                self.r = allr(1)
            else:
                self.r = allr(0)
        elif op.startswith("s_"):
            self.kind = "salu"
            if op in ("s_waitcnt", "s_nop", "s_barrier", "s_endpgm", "s_setprio", "s_sleep"):
                self.kind = "sop"
            elif op.startswith("s_cbranch") or op == "s_branch":
                self.kind = "branch"
                self.target = ops[0]
                if "vcc" in op:
                    self.r = {"vcc"}
                if "exec" in op:
                    self.r = {"exec"}
            elif op.startswith("s_atomic"):
                self.kind = "smem"
                self.w = R(0)
                self.ldst = R(0)
                self.r = allr(0)
            elif op.startswith(("s_load", "s_memtime", "s_memrealtime", "s_buffer_load")):
                self.kind = "smem"
                self.w = R(0)
                self.ldst = R(0)
                self.r = allr(1)
            elif op.startswith(("s_cmp", "s_bitcmp")):
                self.r = allr(0)
            elif "saveexec" in op:
                self.w = R(0) | {"exec"}
                self.r = allr(1) | {"exec"}
            else:
                self.w = R(0)
                self.r = allr(1)
        else:
            raise ValueError("unknown instruction: " + text)

    @property
    def states(self):
        if self.kind in ("label", "dir"):
            return 0
        if self.op == "s_nop":
            return int(self.ops[0], 0) + 1
        return 1

    def base(self):
        return re.sub(r"_(e32|e64|dpp|sdwa)$", "", self.op)


def is_v(r):
    return r[0] in "va" and r != "vcc"


def need(p, c):
    n = 0
    vw = {r for r in p.w if is_v(r)}
    sw = {r for r in p.w if not is_v(r)}
    if p.kind == "valu":
        if c.kind == "mfma" and vw & c.r:
            n = max(n, 2)
        if c.kind == "valu":
            cb = c.base()
            if p.base() in TRANS and cb not in TRANS and vw & c.r:
                n = max(n, 1)
            if p.base() in TRANS and cb in TRANS and vw & c.r:
                n = max(n, 1)
            if cb.startswith("v_permlane") and vw & c.r:
                n = max(n, 2)
            if ("dpp" in c.op or "row_" in c.mods or "quad_perm" in c.mods) and vw & c.r:
                n = max(n, 2)
            if cb in ("v_readlane_b32", "v_readfirstlane_b32") and vw & c.r:
                n = max(n, 1)
            if (sw - {"exec"}) & c.r:
                n = max(n, 4 if cb in ("v_readlane_b32", "v_writelane_b32") else 2)
            if "exec" in sw:
                n = max(n, 5)
            if "sdwa" in p.op or "op_sel:" in p.mods:
                if vw & (c.r | c.w):
                    n = max(n, 1)
        if c.kind == "mfma" and "exec" in sw:
            n = max(n, 4)
        if c.kind == "vmem" and sw & c.r:
            n = max(n, 5)
        if c.kind in ("salu", "smem", "branch") and sw & c.r:
            n = max(n, 1)
    if p.kind == "mfma":
        four = p.passes == 4
        if c.kind == "mfma":
            if p.w & c.srcAB:
                n = max(n, 8 if four else 12)
            if p.w & c.srcC:
                if not (p.w == c.srcC and p.passes == c.passes):
                    n = max(n, 6 if four else 10)
            elif p.w & c.w:
                if not (p.w == c.w and p.passes == c.passes):
                    n = max(n, 6 if four else 10)
        elif c.kind == "valu":
            if p.w & (c.r | c.w):
                n = max(n, 8 if four else 12)
            if p.srcC & c.w:
                n = max(n, 3 if four else 7)
        elif c.kind in ("vmem", "ds"):
            if p.w & (c.r | c.w):
                n = max(n, 8 if four else 12)
            if p.srcC & c.w:
                n = max(n, 3 if four else 7)
    if p.kind == "vmem" and p.store_data:
        if c.kind in ("valu", "mfma") and p.store_data & c.w:
            n = max(n, 2)
        elif p.store_data & c.w:
            n = max(n, 1)
    if p.kind == "salu" and "m0" in p.w and "m0" in c.r and c.kind in ("vmem", "ds"):
        n = max(n, 1)
    return n


class Prog:
    def __init__(self):
        self.ins = []

    def __call__(self, text):
        for line in text.split("\n"):
            if line.strip():
                self.ins.append(Ins(line.strip()))

    def preds(self):
        labels = {x.label: i for i, x in enumerate(self.ins) if x.kind == "label"}
        pr = [[] for _ in self.ins]
        for i, x in enumerate(self.ins):
            if x.kind == "branch":
                if x.target in labels:
                    pr[labels[x.target]].append(i)
                if x.op == "s_branch":
                    continue
            if x.op == "s_endpgm":
                continue
            if i + 1 < len(self.ins):
                pr[i + 1].append(i)
        return pr

    def fix_hazards(self, verbose=False):
        total = 0
        for _ in range(10000):
            pr = self.preds()
            fix = None
            for i, c in enumerate(self.ins):
                if c.kind in ("label", "dir", "sop"):
                    continue
                worst = 0
                stack = [(p, 0) for p in pr[i]]
                seen = {}
                while stack:
                    j, d = stack.pop()
                    if d >= 13 or seen.get(j, 99) <= d:
                        continue
                    seen[j] = d
                    p = self.ins[j]
                    if p.kind not in ("label", "dir", "sop"):
                        k = need(p, c) - d
                        if k > worst:
                            worst = k
                            why = p
                    for q in pr[j]:
                        stack.append((q, d + p.states))
                if worst > 0:
                    fix = (i, worst, why)
                    break
            if fix is None:
                return total
            i, k, why = fix
            if verbose:
                print("nop %d before [%s] after [%s]" % (k, self.ins[i].text, why.text))
            self.ins.insert(i, Ins("s_nop %d" % (k - 1)))
            total += k
        raise RuntimeError("hazard pass did not converge")

    def check_waits(self, trips):
        labels = {x.label: i for i, x in enumerate(self.ins) if x.kind == "label"}
        trips = {k: list(v) for k, v in trips.items()}
        vm, lg = [], []
        smem_out = 0
        i = 0
        steps = 0
        maxvm = 0
        while i < len(self.ins):
            steps += 1
            assert steps < 2000000
            x = self.ins[i]
            if x.op == "s_endpgm":
                break
            if x.op == "s_waitcnt":
                t = " ".join(x.ops)
                m = re.search(r"vmcnt\((\d+)\)", t)
                if m:
                    n = int(m.group(1))
                    while len(vm) > n:
                        vm.pop(0)
                m = re.search(r"lgkmcnt\((\d+)\)", t)
                if m:
                    n = int(m.group(1))
                    if any(k == "smem" for k, _ in lg):
                        if n == 0:
                            lg.clear()
                    else:
                        while len(lg) > n:
                            lg.pop(0)
            elif x.kind not in ("label", "dir", "sop"):
                touched = (x.r | x.w) - {"exec"}
                for k, d in vm:
                    if d & touched:
                        raise RuntimeError("vmcnt violation at [%s]: %s outstanding" % (x.text, sorted(d & touched)))
                for k, d in lg:
                    if d & touched:
                        raise RuntimeError("lgkmcnt violation at [%s]: %s outstanding" % (x.text, sorted(d & touched)))
                if x.kind == "vmem":
                    vm.append(("vm", {r for r in x.ldst if r != "LDS"}))
                    maxvm = max(maxvm, len(vm))
                    assert len(vm) <= 63, "more than 63 vmem ops outstanding at " + x.text
                elif x.kind == "ds":
                    lg.append(("ds", set(x.ldst)))
                elif x.kind == "smem":
                    lg.append(("smem", set(x.ldst)))
            if x.kind == "branch":
                if x.op == "s_branch":
                    i = labels[x.target]
                    continue
                q = trips.get(x.target)
                if q and q.pop(0):
                    i = labels[x.target]
                    continue
            i += 1
        return maxvm

    def text(self):
        out = []
        for x in self.ins:
            out.append(x.text if x.kind in ("label", "dir") else "    " + x.text)
        return "\n".join(out) + "\n"


def _sizes(prog):
    import subprocess, tempfile, os
    src = '.amdgcn_target "amdgcn-amd-amdhsa--gfx950"\n.text\nk:\n' + prog.text()
    d = tempfile.mkdtemp()
    open(d + "/a.s", "w").write(src)
    r = subprocess.run(["clang", "-x", "assembler", "-target", "amdgcn-amd-amdhsa", "-mcpu=gfx950", "-c", d + "/a.s", "-o", d + "/a.o"], capture_output=True, text=True)
    assert r.returncode == 0, r.stderr
    out = subprocess.run(["llvm-objdump", "-d", "--mcpu=gfx950", d + "/a.o"], capture_output=True, text=True).stdout
    sizes = []
    for l in out.split("\n"):
        m = re.match(r"\s+\S+.*?//\s*[0-9A-F]+:\s*((?:[0-9A-F]{8}\s*)+)", l)
        if m:
            sizes.append(len(m.group(1).split()) * 4)
    os.remove(d + "/a.s"); os.remove(d + "/a.o"); os.rmdir(d)
    real = [x for x in prog.ins if x.kind not in ("label", "dir")]
    assert len(real) == len(sizes), (len(real), len(sizes))
    return {id(x): s for x, s in zip(real, sizes)}


def align8(prog, min_run=1, labels=()):
    sz = _sizes(prog)
    out = []
    off = 0
    run = []
    ins = prog.ins
    added = 0
    for i, x in enumerate(ins):
        if x.kind in ("label", "dir"):
            if x.kind == "label" and x.label in labels and off % 8:
                out.append(Ins("s_nop 0")); off += 4; added += 1
            out.append(x)
            continue
        s = sz[id(x)]
        if s == 8 and off % 8 == 4:
            n = 0
            for y in ins[i:]:
                if y.kind in ("label", "dir"):
                    continue
                if sz[id(y)] != 8:
                    break
                n += 1
            fixed = False
            for k in reversed(run):
                y = out[k]
                if y.kind == "valu" and not re.search(r"_(e32|e64|dpp|sdwa)$", y.op) and "permlane" not in y.op and not y.op.startswith(("v_readfirstlane", "v_accvgpr")):
                    out[k] = Ins(y.text.replace(y.op, y.op + "_e64", 1))
                    off += 4
                    fixed = True
                    break
                if y.op == "s_nop" and int(y.ops[0], 0) >= 1:
                    out[k] = Ins("s_nop %d" % (int(y.ops[0], 0) - 1))
                    out.insert(k, Ins("s_nop 0"))
                    off += 4
                    fixed = True
                    break
            if not fixed and n >= min_run:
                k = len(out)
                out.insert(k, Ins("s_nop 0"))
                off += 4
                added += 1
        out.append(x)
        off += s
        if s == 8:
            run = []
        else:
            run.append(len(out) - 1)
    prog.ins = out
    return added
```

```python
import math
import sys
from asmlib import Prog
from gen1 import f32, vr, ar

HEADER = """; GQA attention forward, B=32 Hq=32 Hkv=8 Sq=8 Sk=2048 D=128, bf16 in / bf16 out (HBM-bound: 256 MiB of K/V).
;
; @launch grid=(256,1,1) block=(256,1,1) lds=131072
.amdgcn_target "amdgcn-amd-amdhsa--gfx950"
.text
.globl standalone__gqa_softmax__sampling_kernel
.p2align 8
.type standalone__gqa_softmax__sampling_kernel,@function
standalone__gqa_softmax__sampling_kernel:
"""
FOOTER = """.section .rodata,"a"
.p2align 6
.amdhsa_kernel standalone__gqa_softmax__sampling_kernel
  .amdhsa_next_free_vgpr {nfv}
  .amdhsa_next_free_sgpr {nfs}
  .amdhsa_accum_offset {acc}
  .amdhsa_group_segment_fixed_size 0
  .amdhsa_kernarg_size 48
  .amdhsa_user_sgpr_count 2
  .amdhsa_user_sgpr_kernarg_segment_ptr 1
  .amdhsa_system_sgpr_workgroup_id_x 1
  .amdhsa_float_denorm_mode_32 3
.end_amdhsa_kernel
"""


def gen(HW=5, OWN=0, OFL='', KD=0, diag=False, LAST='r', ORD='KV', HWL=None, B14=False, FIRST=0, DEEP=0, NR=0, HWR=None, FB=None, RK=None, DUM=0):
    p = Prog()
    c = lambda t: p("; " + t)
    NT, STEP = 16, 32768
    C = 128 ** -0.5 * math.log2(math.e)
    sK, sV, sQ, sO = 12, 16, 20, 24
    sC, sLo, sHi, sOffK, sOffV = 28, 29, 30, 31, 32
    vK, vV0, vQ, vDma, vLane = 1, 3, 5, 6, 7
    vM, vL, vT, vNM, vAl, vAW, vAO = 8, 10, 12, 20, 22, 26, 27
    vS, vP, vVT, vO, vVb = 28, 44, 52, 84, 148
    vAX = 180
    vKD = vAX + 14
    vKq = vKD + 8
    nV = vKq + 4 if (KD >= 2 or RK) else (vKq if KD else vKD)
    HWL = HW if HWL is None else HWL
    KL = 61440
    aQ, aK, aKx = 0, 32, 64
    nA = aKx + (0 if KD else 16)
    acc = (nV + 3) // 4 * 4
    QL, ML_LDS = 53248, 49152
    S = lambda t, h: vS + (t * 2 + h) * 4
    O = lambda h, j: vO + (h * 8 + j) * 4
    Kb = lambda t, i, x=False: (aKx if x else aK + 16 * t) + 4 * i
    Vb = lambda e: vVb + 4 * e
    Qf = lambda h, i: aQ + (h * 4 + i) * 4
    VT = lambda j, u: vVT + 4 * j + u
    srd = lambda s: "s[%d:%d]" % (s, s + 3)
    al = (vAl, vAl + 2)

    def kdma_addr():
        c("K staged in LDS as whole rows: slot s of row 4k+g holds its 16-byte chunk s ^ (4g + (k&3))")
        p("v_bfe_u32 v%d, v%d, 4, 2" % (vKD + 4, vLane))
        p("v_lshlrev_b32 v%d, 2, v%d" % (vKD + 5, vKD + 4))
        p("v_xor_b32 v%d, v%d, v%d" % (vKD + 5, vKD + 5, vLane))
        p("v_and_b32 v%d, 15, v%d" % (vKD + 5, vKD + 5))
        p("v_and_b32 v%d, 0x6000, v%d" % (vKD + 6, vK))
        p("v_lshl_add_u32 v%d, v%d, 8, v%d" % (vKD + 6, vKD + 4, vKD + 6))
        p("v_lshl_add_u32 v%d, v%d, 4, v%d" % (vKD, vKD + 5, vKD + 6))
        for k in range(1, 4):
            p("v_xor_b32 v%d, %d, v%d" % (vKD + k, 16 * k, vKD))
        p("v_xor_b32 v%d, v%d, v%d" % (vKD + 4, vKD + 4, vLane))
        p("v_and_b32 v%d, 15, v%d" % (vKD + 4, vKD + 4))
        p("v_and_b32 v%d, 0x7f00, v%d" % (vKD + 5, vK))
        p("v_add_u32 v%d, %d, v%d" % (vKD + 5, KL + (32768 if KD >= 2 else 0), vKD + 5))
        p("v_lshl_add_u32 v%d, v%d, 4, v%d" % (vKD + 4, vKD + 4, vKD + 5))
        for i in range(1, 4):
            p("v_xor_b32 v%d, %d, v%d" % (vKD + 4 + i, 64 * i, vKD + 4))

    def kdma():
        KL2 = KL + (32768 if KD >= 2 else 0)
        p("s_lshl_b32 s38, s36, 2")
        for t in range(2):
            p("s_add_u32 m0, s38, %d" % (KL2 + 4096 * t))
            if t:
                p("s_add_u32 s%d, s%d, 4096" % (sOffK, sOffK))
            for k in range(4):
                p("buffer_load_dwordx4 v%d, %s, s%d offen offset:%d nt lds" % (vKD + k, srd(sK), sOffK, 1024 * k))

    def kdma_read(t):
        for i in range(4):
            p("ds_read_b128 %s, v%d offset:%d" % (ar(Kb(t, i), 4), vKD + 4 + i, 4096 * t))

    c("registers: s[12:15] K, s[16:19] V, s[20:23] Q, s[24:27] out descriptors; s28 = log2(e)/sqrt(128); s29/s30 v_perm selectors;")
    c("  s31/s32 byte offset of the tile being fetched (K / V)")
    c("  v1,v2 K lane offsets (key half 0/1); v3,v4 V lane offsets; v8,v9 running max; v10,v11 running sum (per q half)")
    c("  v28-43 scores; v44-51 packed P; v52-83 transposed V; v84-147 O^T accumulators; v148-179 V tile")
    c("  v180-193 LDS addresses of the merge; v194-201 memory offsets and LDS addresses of the staged K tiles")
    c("  a0-31 Q fragments; a32-63 K tile")
    c("LDS: 0-48K partial outputs, 48K (max, sum) slots, 52K-60K Q, 60K-92K last K tile, 92K-124K staged K units (8 KiB per wave each)")
    p("s_load_dwordx8 s[4:11], s[0:1], 0")
    p("s_cmp_ge_u32 s2, 256")
    p("s_cbranch_scc1 L_end")
    if diag:
        p("s_memrealtime s[40:41]")
        p("s_load_dwordx2 s[60:61], s[0:1], 40")
    if FB or RK:
        p("s_load_dwordx2 s[48:49], s[0:1], 32")
    c("block index and per-lane offsets (lane = 16g + n, wave = 2*hb + rb)")
    p("s_and_b32 s33, s2, 7")
    p("s_lshr_b32 s35, s2, 3")
    p("s_lshl_b32 s33, s33, 5")
    p("s_or_b32 s33, s33, s35")
    p("s_lshl_b32 s35, s33, 19")
    p("s_lshl_b32 s33, s33, 13")
    p("v_lshrrev_b32 v14, 6, v0              ; wave")
    p("v_and_b32 v%d, 63, v0" % vLane)
    p("v_lshlrev_b32 v15, 13, v14")
    c("K: lane reads key row 4*(n&3) + (n>>2), bytes 16g + 64i; this row order makes V's rows come out contiguous")
    p("v_and_b32 v16, 3, v0")
    p("v_bfe_u32 v17, v0, 2, 2")
    p("v_lshl_add_u32 v16, v16, 2, v17")
    p("v_lshl_add_u32 v16, v16, 8, v15")
    p("v_and_b32 v17, 0x30, v0               ; 16 g")
    p("v_add_u32 v%d, v16, v17" % vK)
    p("v_add_u32 v%d, 4096, v%d" % (vK + 1, vK))
    c("waves 2,3 hold the two q halves swapped, odd waves hold the d chunks with bit 1 flipped: the quarter of the")
    c("output a wave finishes itself then sits in the same registers for every wave")
    p("v_and_b32 v16, 15, v0")
    p("v_lshl_add_u32 v16, v16, 8, v17")
    p("v_bfe_u32 v18, v0, 7, 1               ; hb")
    p("v_lshl_add_u32 v%d, v18, 12, v16" % vQ)
    c("Q goes to LDS once (2 KiB per wave), 16-byte chunks xor-swizzled by row so the fragment reads are conflict-free")
    p("v_lshrrev_b32 v19, 4, v%d" % vLane)
    p("v_lshl_add_u32 v19, v14, 3, v19")
    p("v_xor_b32 v20, v19, v0")
    p("v_and_b32 v20, 15, v20")
    p("v_lshlrev_b32 v20, 4, v20")
    p("v_lshl_add_u32 v%d, v19, 8, v20" % vDma)
    p("v_xor_b32 v21, 64, v%d                ; four rows further down" % vDma)
    p("v_readfirstlane_b32 s36, v14")
    p("s_lshl_b32 s36, s36, 11")
    p("s_add_u32 m0, s36, %d" % QL)
    c("V: whole rows, lane = 16-byte chunk")
    p("v_bfe_u32 v18, v0, 6, 1               ; rb")
    if OWN == 0:
        p("v_lshlrev_b32 v19, 1, v18")
        p("v_xor_b32 v19, v19, v%d" % vLane)
        p("v_lshl_add_u32 v%d, v19, 4, v15" % vV0)
    else:
        p("v_bfe_u32 v19, v0, 1, 1")
        p("v_xor_b32 v19, v19, v18")
        p("v_lshl_add_u32 v19, v19, 7, v15")
        p("v_bfe_u32 v20, v0, 2, 2")
        p("v_lshl_add_u32 v19, v20, 5, v19")
        p("v_and_b32 v20, 1, v0")
        p("v_lshl_add_u32 v19, v20, 4, v19")
        p("v_lshl_add_u32 v%d, v17, 4, v19" % vV0)
    p("v_add_u32 v%d, 4096, v%d" % (vV0 + 1, vV0))
    if KD >= 2:
        c("K through LDS: a load covers 16 rows x 64 B, lane = 4*row + piece; pieces are xor-swizzled by 3*(row>>3)")
        p("v_bfe_u32 v19, v0, 2, 2               ; m & 3")
        p("v_bfe_u32 v20, v0, 4, 2               ; m >> 2")
        p("v_lshl_add_u32 v19, v19, 2, v20")
        p("v_lshl_add_u32 v19, v19, 8, v15")
        p("v_bfe_i32 v20, v0, 5, 1               ; -(m >> 3)")
        p("v_xor_b32 v20, v20, v0")
        p("v_and_b32 v20, 3, v20")
        p("v_lshl_add_u32 v%d, v20, 4, v19" % vKq)
        p("v_add_u32 v%d, 4096, v%d" % (vKq + 1, vKq))
        p("s_lshl_b32 s37, s36, 2")
        p("s_add_u32 s37, s37, %d" % KL)
    if FIRST:
        kdma_addr()
        p("s_lshl_b32 s38, s36, 2")
    if FB:
        C0, G, Bias, NMAX, NDEF, DL = FB
        kdma_addr()
        p("s_lshl_b32 s38, s36, 2")
        p("s_mov_b32 s50, 1")
        p("s_mov_b32 s51, %d" % (30 - NDEF))
        p("s_mov_b32 s52, 0")
        p("s_cmp_eq_u32 s36, 0")
        p("s_cselect_b32 s54, %d, -1" % (STEP * C0))
        p("s_cselect_b32 s55, %d, -1" % (STEP * (C0 + DL)))
        p("v_mov_b32 v22, %d" % (51200))
        p("v_mov_b32 v23, s51")
        p("ds_write_b32 v22, v23")
    if RK:
        p("v_mov_b32 v22, 51200")
        p("v_mov_b32 v23, %d" % (30 - RK[1]))
        p("ds_write_b32 v22, v23")
    for s, size in ((sK, 524288), (sV, 524288), (sQ, 8192), (sO, 8192)):
        p("s_mov_b32 s%d, %d" % (s + 2, size))
        p("s_mov_b32 s%d, 0x20000" % (s + 3))
    p("s_mov_b32 s%d, 0" % sOffK)
    p("s_mov_b32 s%d, 0" % sOffV)
    p("s_waitcnt lgkmcnt(0)")

    def mk(s, lo, sh):
        p("s_add_u32 s%d, s%d, s%d" % (s, lo, sh))
        p("s_addc_u32 s%d, s%d, 0" % (s + 1, lo + 1))

    def load_k(t, x=False):
        for i in range(4):
            p("buffer_load_dwordx4 %s, v%d, %s, s%d offen offset:%d nt" % (ar(Kb(t, i, x), 4), vK + t, srd(sK), sOffK, 64 * i))

    def load_v(t):
        for r in range(4):
            p("buffer_load_dwordx4 %s, v%d, %s, s%d offen offset:%d nt" % (vr(Vb(4 * t + r), 4), vV0 + t, srd(sV), sOffV, 1024 * r))

    def step_off(s):
        p("s_add_u32 s%d, s%d, %d" % (s, s, STEP))

    wait = lambda n: p("s_waitcnt vmcnt(%d)" % n)
    nst = [0]
    mid = [False]
    inloop = [False]

    def st():
        if diag == 2:
            p("s_memrealtime s[%d:%d]" % (64 + 2 * nst[0], 65 + 2 * nst[0]))
            nst[0] += 1

    def load_kq(t, i, last=False):
        p("s_add_u32 m0, s37, %d" % (4096 * t + 960 * i + (32768 if last else 0)))
        p("buffer_load_dwordx4 v%d, %s, s%d offen offset:%d nt lds" % (vKq + t, srd(sK), sOffK, 64 * i))

    lab = [0]

    def unit(t):
        if FB and inloop[0]:
            lab[0] += 1
            n = lab[0]
            p("s_mov_b32 s53, s52")
            p("s_cmp_ge_u32 s50, s51")
            p("s_cselect_b32 s52, 1, 0")
            p("s_cbranch_scc1 L_ri%d" % n)
            load_k(t)
            p("s_branch L_rj%d" % n)
            p("L_ri%d:" % n)
            p("s_add_u32 m0, s38, %d" % (KL + 32768 + 4096 * t))
            p("s_add_u32 s39, s%d, %d" % (sOffK, 4096 * t))
            for k in range(4):
                p("buffer_load_dwordx4 v%d, %s, s39 offen offset:%d nt lds" % (vKD + k, srd(sK), 1024 * k))
            p("L_rj%d:" % n)
            load_v(t)
            p("s_add_u32 s50, s50, 1")
            return
        if KD < 2:
            load_k(t)
            load_v(t)
            return
        lv = lambda r: p("buffer_load_dwordx4 %s, v%d, %s, s%d offen offset:%d nt" % (vr(Vb(4 * t + r), 4), vV0 + t, srd(sV), sOffV, 1024 * r))
        if ORD == "KV":
            for i in range(4):
                load_kq(t, i)
            for r in range(4):
                lv(r)
        elif ORD == "VK":
            for r in range(4):
                lv(r)
            for i in range(4):
                load_kq(t, i)
        else:
            for i in range(4):
                load_kq(t, i)
                lv(i)

    def read_kq(t, last=False):
        for i in range(4):
            p("ds_read_b128 %s, v%d offset:%d" % (ar(Kb(t, i), 4), vKq + 2, 4096 * t + 1024 * i + (32768 if last else 0)))

    def consume(t, us):
        if FB:
            lab[0] += 1
            n = lab[0]
            wait(12)
            p("s_cmp_eq_u32 s53, 0")
            p("s_cbranch_scc1 L_ca%d" % n)
            for i in range(4):
                p("ds_read_b128 %s, v%d offset:%d" % (ar(Kb(t, i), 4), vKD + 4 + i, 32768 + 4096 * t))
            wait(8)
            perms(range(8), us)
            p("s_waitcnt lgkmcnt(0)")
            qk(t)
            p("s_branch L_cb%d" % n)
            p("L_ca%d:" % n)
            qk(t)
            wait(8)
            perms(range(8), us)
            p("L_cb%d:" % n)
            return
        if KD < 2:
            wait(12)
            if FIRST and t == 0 and not mid[0]:
                p("L_mid:")
                mid[0] = True
            qk(t)
            wait(8)
            perms(range(8), us)
        elif ORD == "KV":
            wait(12)
            read_kq(t)
            wait(8)
            perms(range(8), us)
            p("s_waitcnt lgkmcnt(0)")
            qk(t)
        else:
            wait(8)
            read_kq(t)
            perms(range(8), us)
            p("s_waitcnt lgkmcnt(0)")
            qk(t)

    c("first loads: Q share, then the first unit (keys 0-15 of tile 0)")
    mk(sQ, 4, 33)
    p("buffer_load_dwordx4 v%d, %s, 0 offen nt lds" % (vDma, srd(sQ)))
    p("buffer_load_dwordx4 v21, %s, 0 offen offset:1024 nt lds" % srd(sQ))
    mk(sK, 6, 35)
    if FIRST:
        p("s_add_u32 m0, s38, %d" % KL)
        mk(sV, 8, 35)
        for k in range(4):
            p("buffer_load_dwordx4 v%d, %s, s%d offen offset:%d nt lds" % (vKD + k, srd(sK), sOffK, 1024 * k))
        if FIRST == 2:
            p("s_add_u32 m0, s38, %d" % (KL + 4096))
            p("s_mov_b32 s39, 4096")
        load_v(0)
    else:
        mk(sV, 8, 35)
        unit(0)
    mk(sO, 10, 33)
    p("s_mov_b32 s%d, %s" % (sC, f32(C)))
    p("s_mov_b32 s%d, 0x05040100" % sLo)
    p("s_mov_b32 s%d, 0x07060302" % sHi)
    p("v_lshlrev_b32 v15, 12, v14")
    p("v_lshl_add_u32 v%d, v%d, 3, v15       ; wave*4096 + lane*8" % (vAW, vLane))
    p("v_and_b32 v16, 0x1f00, v%d" % vQ)
    if OWN == 0:
        p("v_lshlrev_b32 v17, 2, v17")
        p("v_lshl_add_u32 v17, v18, 5, v17")
    elif OWN == 1:
        p("v_lshlrev_b32 v17, 1, v17")
        p("v_lshl_add_u32 v17, v18, 7, v17")
    elif OWN == 2:
        p("v_lshl_add_u32 v17, v18, 7, v17")
    else:
        p("v_and_b32 v16, 0x1700, v16")
        p("v_lshl_add_u32 v17, v18, 7, v17")
        p("v_bfe_u32 v19, v0, 3, 1")
        p("v_lshl_add_u32 v17, v19, 6, v17")
    p("v_add_u32 v%d, v16, v17               ; output offset" % vAO)
    if KD >= 2:
        p("v_bfe_i32 v16, v0, 3, 1               ; -(n >> 3)")
        p("v_lshrrev_b32 v17, 4, v0")
        p("v_xor_b32 v16, v16, v17")
        p("v_and_b32 v16, 3, v16")
        p("v_lshlrev_b32 v16, 4, v16")
        p("v_and_b32 v17, 15, v0")
        p("v_lshl_add_u32 v16, v17, 6, v16")
        p("v_add_u32 v%d, s37, v16" % (vKq + 2))
    c("softmax state: max = -3e38 (its first rescale factor is 0), sum = 0, accumulators = 0")
    for h in range(2):
        p("v_mov_b32 v%d, 0xff61b1e6" % (vM + h))
        p("v_mov_b32 v%d, 0" % (vL + h))
    for i in range(0, 64, 2):
        p("v_pk_mul_f32 %s, %s, 0 op_sel_hi:[1,0]" % (vr(vO + i, 2), vr(vL, 2)))
    wait(8)
    p("s_barrier")
    c("Q fragments: lane (n, g) of fragment (h, i) = row 16h+n, chunk 4i+g")
    p("v_and_b32 v16, 15, v0")
    p("v_bfe_u32 v17, v0, 4, 2")
    p("v_xor_b32 v17, v17, v16")
    p("v_lshlrev_b32 v17, 4, v17")
    p("v_and_b32 v16, 0x1f00, v%d" % vQ)
    p("v_add_u32 v%d, v16, v17" % vS)
    for k in range(1, 8):
        p("v_xor_b32 v%d, %d, v%d" % (vS + k, 4096 * (k // 4) + 64 * (k % 4), vS))
    for h in range(2):
        for i in range(4):
            p("ds_read_b128 %s, v%d offset:%d" % (ar(Qf(h, i), 4), vS + 4 * h + i, QL))
    p("s_waitcnt lgkmcnt(0)")

    def qk(t, x=False):
        for i in range(4):
            for h in range(2):
                p("v_mfma_f32_16x16x32_bf16 %s, %s, %s, %s" % (vr(S(t, h), 4), ar(Kb(t, i, x), 4), ar(Qf(h, i), 4), "0" if i == 0 else vr(S(t, h), 4)))

    def perms(js, us):
        for j in js:
            for u in us:
                p("v_perm_b32 v%d, v%d, v%d, s%d" % (VT(j, u), Vb(2 * u + 1) + j // 2, Vb(2 * u) + j // 2, sHi if j & 1 else sLo))

    def mf(js, hs=(0, 1)):
        for j in js:
            for h in hs:
                p("v_mfma_f32_16x16x32_bf16 %s, %s, %s, %s" % (vr(O(h, j), 4), vr(VT(j, 0), 4), vr(vP + 4 * h, 4), vr(O(h, j), 4)))

    def softmax():
        c("online softmax: tile max (in lane, then across the four lane groups), new running max")
        for h in range(2):
            x, y = S(0, h), S(1, h)
            p("v_max3_f32 v%d, v%d, v%d, v%d" % (vT + h, x, x + 1, x + 2))
            p("v_max3_f32 v%d, v%d, v%d, v%d" % (vT + 2 + h, x + 3, y, y + 1))
            p("v_max3_f32 v%d, v%d, v%d, v%d" % (vT + h, y + 2, y + 3, vT + h))
            p("v_max3_f32 v%d, v%d, v%d, v%d" % (vT + h, vT + h, vT + 2 + h, vM + h))
        p("v_permlane32_swap_b32 v%d, v%d" % (vT, vT + 1))
        p("v_max_f32 v%d, v%d, v%d" % (vT, vT, vT + 1))
        p("v_mov_b32 v%d, v%d" % (vT + 1, vT))
        p("v_permlane16_swap_b32 v%d, v%d" % (vT, vT + 1))
        p("v_max_f32 v%d, v%d, v%d" % (vT, vT, vT + 1))
        p("v_mov_b32 v%d, v%d" % (vT + 1, vT))
        p("v_permlane32_swap_b32 v%d, v%d" % (vT, vT + 1))
        c("alpha = 2^((old - new) c), p = 2^(s c - new c)")
        for h in range(2):
            p("v_mul_f32 v%d, s%d, v%d" % (vNM + h, sC, vT + h))
        for h in range(2):
            p("v_fma_f32 v%d, v%d, s%d, -v%d" % (al[h], vM + h, sC, vNM + h))
        for h in range(2):
            p("v_mov_b32 v%d, v%d" % (vM + h, vT + h))
        for h in range(2):
            p("v_exp_f32 v%d, v%d" % (al[h], al[h]))
        regs = [(S(t, h) + r, h) for h in range(2) for t in range(2) for r in range(4)]
        for x, h in regs:
            p("v_fma_f32 v%d, v%d, s%d, -v%d" % (x, x, sC, vNM + h))
        for x, h in regs:
            p("v_exp_f32 v%d, v%d" % (x, x))
        c("rescale the accumulators, pack P, update the row sums")
        for h in range(2):
            for k in range(0, 32, 2):
                x = O(h, 0) + k
                p("v_pk_mul_f32 %s, %s, %s op_sel_hi:[1,0]" % (vr(x, 2), vr(x, 2), vr(al[h], 2)))
        for h in range(2):
            for k, x in enumerate((S(0, h), S(0, h) + 2, S(1, h), S(1, h) + 2)):
                p("v_cvt_pk_bf16_f32 v%d, v%d, v%d" % (vP + 4 * h + k, x, x + 1))
        for h in range(2):
            x, y = S(0, h), S(1, h)
            p("v_pk_add_f32 %s, %s, %s" % (vr(x, 2), vr(x, 2), vr(x + 2, 2)))
            p("v_pk_add_f32 %s, %s, %s" % (vr(y, 2), vr(y, 2), vr(y + 2, 2)))
        for h in range(2):
            p("v_pk_add_f32 %s, %s, %s" % (vr(S(0, h), 2), vr(S(0, h), 2), vr(S(1, h), 2)))
        for h in range(2):
            p("v_fma_f32 v%d, v%d, v%d, v%d" % (vL + h, vL + h, al[h], S(0, h)))
        for h in range(2):
            p("v_add_f32 v%d, v%d, v%d" % (vL + h, vL + h, S(0, h) + 1))

    def tile(before_last):
        c("step A: unit a (keys 0-15) is landing; fetch unit b (keys 16-31), then consume a")
        if before_last and KD and LAST == "r" and not FIRST and not FB:
            kdma_addr()
        wait(HW)
        if before_last and B14:
            p("s_lshl_b32 s38, s36, 1")
            p("s_add_u32 m0, s38, %d" % (KL + 32768))
            p("s_add_u32 s39, s%d, 4096" % sOffK)
            for k in range(4):
                p("buffer_load_dwordx4 v%d, %s, s39 offen offset:%d nt lds" % (vKD + k, srd(sK), 1024 * k))
            load_v(1)
        else:
            unit(1)
        step_off(sOffK)
        step_off(sOffV)
        if before_last and DEEP:
            if DEEP == 2:
                wait(8 + HW)
            kdma()
            n = 8 if DEEP == 1 else 8
            wait(12 + n)
            qk(0)
            wait(8 + n)
            perms(range(8), (0, 1))
            c("step B: fetch the first half of the last V tile, finish tile 14")
            wait(HW + 8)
            load_v(0)
            wait(16)
            qk(1)
            wait(12)
            perms(range(8), (2, 3))
            load_v(1)
            softmax()
            mf(range(8))
            return
        consume(0, (0, 1))
        if not before_last:
            c("step B: unit b is landing; fetch unit a of the next tile, then finish this tile")
            wait(HW)
            unit(0)
        else:
            c("step B: the last tile is fetched K first, V second, so that its softmax runs while V is in flight")
            wait(HW)
            if KD and LAST == "r":
                if FB:
                    p("s_mov_b32 s53, s52")
                kdma()
            elif KD:
                for t in range(2):
                    for i in range(4):
                        load_kq(t, i, True)
            else:
                load_k(0)
                load_k(1, True)
        if before_last and B14:
            p("v_and_b32 v%d, 0x6000, v%d" % (vT + 4, vK))
            p("v_lshrrev_b32 v%d, 1, v%d" % (vT + 4, vT + 4))
            p("v_sub_u32 v%d, 32768, v%d" % (vT + 4, vT + 4))
            for i in range(4):
                p("v_add_u32 v%d, v%d, v%d" % (vS + 8 + i, vKD + 4 + i, vT + 4))
            wait(12)
            for i in range(4):
                p("ds_read_b128 %s, v%d" % (ar(Kb(1, i), 4), vS + 8 + i))
            wait(8)
            perms(range(8), (2, 3))
            p("s_waitcnt lgkmcnt(0)")
            qk(1)
        else:
            consume(1, (2, 3))
        softmax()
        c("O^T += V^T P^T")
        mf(range(8))

    def runit(half):
        p("s_add_u32 m0, s38, %d" % (KL + 32768 + 4096 * half))
        if half:
            p("s_add_u32 s39, s%d, 4096" % sOffK)
        else:
            p("s_mov_b32 s39, s%d" % sOffK)
        for k in range(4):
            p("buffer_load_dwordx4 v%d, %s, s39 offen offset:%d nt lds" % (vKD + k, srd(sK), 1024 * k))
        load_v(half)

    def rconsume(half):
        wait(12)
        for i in range(4):
            p("ds_read_b128 %s, v%d offset:%d" % (ar(Kb(half, i), 4), vKD + 4 + i, 32768 + 4096 * half))
        wait(8)
        perms(range(8), (0, 1) if half == 0 else (2, 3))
        p("s_waitcnt lgkmcnt(0)")
        qk(half)

    def dyn_issue(half, then=None):
        lab[0] += 1
        n = lab[0]
        p("s_mov_b32 s53, s52")
        p("s_cmp_ge_u32 s50, s51")
        p("s_cselect_b32 s52, 1, 0")
        p("s_cbranch_scc1 L_ri%d" % n)
        load_k(half)
        p("s_branch L_rj%d" % n)
        p("L_ri%d:" % n)
        p("s_add_u32 m0, s38, %d" % (KL + 32768 + 4096 * half))
        p("s_add_u32 s39, s%d, %d" % (sOffK, 4096 * half))
        for k in range(4):
            p("buffer_load_dwordx4 v%d, %s, s39 offen offset:%d nt lds" % (vKD + k, srd(sK), 1024 * k))
        p("L_rj%d:" % n)
        load_v(half)
        p("s_add_u32 s50, s50, 1")

    def dyn_consume(half):
        lab[0] += 1
        n = lab[0]
        us = (0, 1) if half == 0 else (2, 3)
        wait(12)
        p("s_cmp_eq_u32 s53, 0")
        p("s_cbranch_scc1 L_ca%d" % n)
        for i in range(4):
            p("ds_read_b128 %s, v%d offset:%d" % (ar(Kb(half, i), 4), vKD + 4 + i, 32768 + 4096 * half))
        wait(8)
        perms(range(8), us)
        p("s_waitcnt lgkmcnt(0)")
        qk(half)
        p("s_branch L_cb%d" % n)
        p("L_ca%d:" % n)
        qk(half)
        wait(8)
        perms(range(8), us)
        p("L_cb%d:" % n)

    def tile_rk(T):
        C0, NDEF, T1, T2, PFL = RK
        c("---------------- tile %d" % T)
        def dbg_srd():
            p("s_mov_b32 s44, s48")
            p("s_and_b32 s45, s49, 0xffff")
            p("s_mov_b32 s46, 256")
            p("s_mov_b32 s47, 0x20000")
            p("s_and_b32 s56, s2, 7")
            p("s_lshl_b32 s56, s56, 5")
        if T == C0 - 1:
            c("bring the group's line into this die's L2 ahead of the checkpoint")
            dbg_srd()
            p("v_cmp_eq_u32 vcc, 0, v0")
            p("v_mov_b32 v%d, 0x1000" % vKq)
            p("v_cndmask_b32_e64 v%d, v%d, 0, vcc" % (vKq, vKq))
            p("buffer_load_dword v%d, v%d, s[44:47], s56 offen" % (vKq + 1, vKq))
            wait(HW + 1)
            unit(1)
            step_off(sOffK)
            step_off(sOffV)
            wait(13)
            qk(0)
            wait(9)
            perms(range(8), (0, 1))
            wait(HW)
            unit(0)
            consume(1, (2, 3))
            softmax()
            mf(range(8))
            return
        if T == C0:
            c("checkpoint: mark this workgroup in its group's byte array and count the marks already there")
            p("s_mov_b32 s44, s48")
            p("s_and_b32 s45, s49, 0xffff")
            p("s_mov_b32 s46, 256")
            p("s_mov_b32 s47, 0x20000")
            p("s_and_b32 s56, s2, 7")
            p("s_lshl_b32 s56, s56, 5")
            p("s_lshr_b32 s57, s2, 3")
            p("s_add_u32 s57, s57, s56")
            p("v_cmp_eq_u32 vcc, 0, v0")
            p("v_mov_b32 v%d, 0x1000" % vKq)
            p("v_mov_b32 v%d, 1" % (vKq + 1))
            p("v_cndmask_b32 v%d, v%d, 0, vcc" % (vKq, vKq) if False else "v_cndmask_b32_e64 v%d, v%d, 0, vcc" % (vKq, vKq))
            if "W" in PFL:
                p("v_lshlrev_b32 v%d, 2, v0" % (vKq + 2))
                p("v_cmp_gt_u32 vcc, 8, v0")
                p("v_mov_b32 v%d, 0x1000" % (vKq + 3))
                p("v_cndmask_b32 v%d, v%d, v%d, vcc" % (vKq + 2, vKq + 3, vKq + 2))
            else:
                p("v_and_b32 v%d, 7, v0" % (vKq + 2))
                p("v_lshlrev_b32 v%d, 2, v%d" % (vKq + 2, vKq + 2))
            p("buffer_store_byte v%d, v%d, s[44:47], s57 offen" % (vKq + 1, vKq))
            p("buffer_load_dword v%d, v%d, s[44:47], s56 offen %s" % (vKq + 2, vKq + 2, PFL.replace('W', '').replace('P', '')))
            wait(HW + 2)
            unit(1)
            step_off(sOffK)
            step_off(sOffV)
            wait(14)
            qk(0)
            wait(10)
            perms(range(8), (0, 1))
            wait(HW)
            unit(0)
            p("v_sad_u8 v%d, v%d, 0, 0" % (vKq + 2, vKq + 2))
            for sh in (1, 2, 4):
                p("v_add_u32_dpp v%d, v%d, v%d row_shr:%d row_mask:0xf bank_mask:0xf bound_ctrl:1" % (vKq + 2, vKq + 2, vKq + 2, sh))
            p("v_readlane_b32 s56, v%d, 7" % (vKq + 2))
            if diag:
                p("s_mov_b32 s62, s56")
                p("s_memrealtime s[90:91]")
                p("s_waitcnt lgkmcnt(0)")
            p("s_mov_b32 s57, %d" % (30 - NDEF + 2))
            for th in (32 - T2, 32 - T1, T1, T2):
                pass
            for th in (T2 + 1, T1 + 1, 32 - T1, 32 - T2):
                p("s_cmp_ge_u32 s56, %d" % th)
                p("s_subb_u32 s57, s57, 0")
            p("s_cmp_eq_u32 s36, 0")
            p("s_cbranch_scc0 L_nob")
            p("v_mov_b32 v%d, s57" % (vKq + 1))
            p("v_mov_b32 v%d, 51200" % vKq)
            p("ds_write_b32 v%d, v%d" % (vKq, vKq + 1))
            p("L_nob:")
            consume(1, (2, 3))
            softmax()
            mf(range(8))
            p("s_mov_b32 s52, 0")
            p("s_mov_b32 s50, %d" % (2 * C0 + 3))
            kdma_addr()
            p("s_lshl_b32 s38, s36, 2")
            return
        if T == C0 + 1:
            p("v_mov_b32 v%d, 51200" % vKq)
            p("ds_read_b32 v%d, v%d" % (vKq + 1, vKq))
            p("s_waitcnt lgkmcnt(0)")
            p("v_readfirstlane_b32 s51, v%d" % (vKq + 1))
            if diag:
                p("s_lshl_b32 s63, s51, 8")
                p("s_or_b32 s62, s62, s63")
        wait(HW)
        dyn_issue(1)
        step_off(sOffK)
        step_off(sOffV)
        dyn_consume(0)
        wait(HW)
        if T == NT - 2:
            p("s_mov_b32 s53, s52")
            kdma()
        else:
            dyn_issue(0)
        dyn_consume(1)
        softmax()
        mf(range(8))

    def tile_x(T):
        isr = lambda TT, half: 2 * TT + half >= 2 * (NT - 1) - NR
        c("---------------- tile %d" % T)
        hw = lambda r: HWR if (r and HWR is not None) else HW
        c("step A: fetch unit b%s, consume unit a%s" % (" (K staged)" if isr(T, 1) else "", " (K staged)" if isr(T, 0) else ""))
        wait(hw(isr(T, 0)))
        (runit if isr(T, 1) else unit)(1)
        step_off(sOffK)
        step_off(sOffV)
        if isr(T, 0):
            rconsume(0)
        else:
            consume(0, (0, 1))
        if T == NT - 2:
            c("step B: the last tile is fetched K first, V second, so that its softmax runs while V is in flight")
        else:
            c("step B: fetch unit a of the next tile, finish this tile")
        wait(hw(isr(T, 1)))
        if T == NT - 2:
            kdma()
        else:
            (runit if isr(T + 1, 0) else unit)(0)
        if isr(T, 1):
            rconsume(1)
        else:
            consume(1, (2, 3))
        softmax()
        for i in range(DUM):
            p("v_mov_b32 v%d, 0" % (vT + 6))
        c("O^T += V^T P^T")
        mf(range(8))

    if FIRST:
        c("the first unit's K came through LDS: fetch unit b, read the fragments, join the loop behind its first wait")
        wait(HW)
        unit(1)
        step_off(sOffK)
        step_off(sOffV)
        wait(12)
        kdma_read(0)
        p("s_waitcnt lgkmcnt(0)")
        p("s_branch L_mid")
    c("---------------- tiles 0..%d" % (NT - 3 - (NR // 2 if NR else 0)))
    inloop[0] = True
    p("L_loop:")
    if FB:
        C0, G, Bias, NMAX, NDEF, DL = FB
        c("progress feedback: rank of this workgroup at tile %d decides how many late units use whole-row K loads" % C0)
        p("s_cmp_lg_u32 s%d, s54" % sOffV)
        p("s_cbranch_scc1 L_f1")
        p("s_mov_b32 s56, 1")
        p("s_atomic_add s56, s[48:49], 0 glc")
        p("L_f1:")
        p("s_cmp_lg_u32 s%d, s55" % sOffV)
        p("s_cbranch_scc1 L_f2")
        p("s_waitcnt lgkmcnt(0)")
        p("s_mul_i32 s56, s56, %d" % G)
        p("s_add_i32 s56, s56, %d" % Bias)
        p("s_ashr_i32 s56, s56, 8")
        p("s_max_i32 s56, s56, 0")
        p("s_min_i32 s56, s56, %d" % NMAX)
        p("s_sub_u32 s56, 30, s56")
        p("v_mov_b32 v%d, s56" % (vT + 5))
        p("v_mov_b32 v%d, 51200" % (vT + 4))
        p("ds_write_b32 v%d, v%d" % (vT + 4, vT + 5))
        p("L_f2:")
        p("s_cmp_lg_u32 s%d, %d" % (sOffV, STEP * (C0 + DL + 1)))
        p("s_cbranch_scc1 L_f3")
        p("v_mov_b32 v%d, 51200" % (vT + 4))
        p("ds_read_b32 v%d, v%d" % (vT + 5, vT + 4))
        p("s_waitcnt lgkmcnt(0)")
        p("v_readfirstlane_b32 s51, v%d" % (vT + 5))
        p("L_f3:")
    tile(False)
    npeel = 1 + (NR // 2 if NR else 0)
    if RK:
        npeel = NT - 1 - RK[0] + (1 if "P" in RK[4] else 0)
    p("s_cmp_lt_u32 s%d, %d" % (sOffV, STEP * (NT - 1 - npeel)))
    p("s_cbranch_scc1 L_loop")
    if RK:
        for T in range(NT - 1 - npeel, NT - 1):
            tile_rk(T)
    elif NR:
        kdma_addr()
        p("s_lshl_b32 s38, s36, 2")
        for T in range(NT - 1 - npeel, NT - 1):
            tile_x(T)
    else:
        c("---------------- tile 14")
        tile(True)
    c("---------------- tile 15 and the merge of the four waves")
    if not DEEP:
        wait(HWL)
        load_v(0)
        load_v(1)
    c("LDS addresses of the merge: 6 write areas, 3 read areas, (max, sum) slots")
    p("v_lshlrev_b32 v%d, 3, v%d" % (vAX + 9, vLane))
    p("v_add_u32 v%d, v%d, v%d" % (vAX, vAW, vAX + 9))
    p("v_lshrrev_b32 v%d, 3, v%d" % (vAX + 10, vAW))
    for k in range(1, 6):
        p("v_add_u32 v%d, %d, v%d" % (vAX + k, 16384 * (k // 2) + 2048 * (k % 2), vAX))
    p("v_and_b32 v%d, 0x600, v%d" % (vAX + 10, vAX + 10))
    for x in range(1, 4):
        p("v_xor_b32 v%d, %d, v%d" % (vAX + 5 + x, 4096 * x, vAX))
    p("v_add_u32 v%d, v%d, v%d" % (vAX + 9, vAX + 9, vAX + 10))
    p("v_and_b32 v%d, 0x678, v%d" % (vAX + 10, vAX + 9))
    for x, k in ((1, 0x200), (2, 0x500), (3, 0x700)):
        p("v_xor_b32 v%d, %d, v%d" % (vAX + 10 + x, k, vAX + 10))
    if KD:
        rd = kdma_read if LAST == "r" else (lambda t: read_kq(t, True))
        wait(12)
        rd(0)
        wait(8)
        st()
        rd(1)
        p("s_waitcnt lgkmcnt(%d)" % (0 if diag == 2 else 4))
        qk(0)
        p("s_waitcnt lgkmcnt(0)")
        qk(1)
    else:
        wait(12)
        qk(0)
        wait(8)
        qk(1, True)
    softmax()
    c("publish (scaled max, sum) of both q halves: lanes 0-31 carry half 0, lanes 32-63 half 1")
    p("v_permlane32_swap_b32 v%d, v%d" % (vL, vL + 1))
    p("v_permlane32_swap_b32 v%d, v%d" % (vNM, vNM + 1))
    p("v_add_f32 v%d, v%d, v%d" % (vL, vL, vL + 1))
    p("v_mov_b32 v%d, v%d" % (vL + 1, vL))
    p("v_permlane16_swap_b32 v%d, v%d" % (vL, vL + 1))
    p("v_add_f32 v%d, v%d, v%d" % (vNM + 1, vL, vL + 1))
    p("ds_write_b64 v%d, %s offset:%d" % (vAX + 9, vr(vNM, 2), ML_LDS))
    st()
    wait(4)
    perms(range(8), (0, 1))
    wait(0)
    st()

    def wr(x, jp):
        h, r = ((0, 2), (1, 0), (1, 2))[x - 1]
        p("ds_write2_b64 v%d, %s, %s offset0:%d offset1:%d" % (vAX + 2 * (x - 1) + jp // 2, vr(O(h, 2 * jp) + r, 2), vr(O(h, 2 * jp + 1) + r, 2), 128 * (jp % 2), 128 * (jp % 2) + 1))
    c("last PV; the three quarters other waves finish go to LDS as soon as their accumulators are complete")
    perms((0,), (2, 3))
    for j in range(8):
        if j < 7:
            perms((j + 1,), (2, 3))
        mf((j,), (1,))
    for j in range(8):
        mf((j,), (0,))
        wr(2 + j % 2, j // 2)
        if j in (5, 7):
            wr(1, (j - 5) // 2)
    if diag:
        p("s_memrealtime s[42:43]")
    wr(1, 2)
    wr(1, 3)
    p("s_waitcnt lgkmcnt(0)")
    st()
    p("s_barrier")
    st()
    ML, G = vS + 4, vS + 12
    X = lambda x, jp: vVb + 16 * (x - 1) + 4 * jp if x < 3 else vVT + 4 * jp
    for x in range(4):
        p("ds_read_b64 %s, v%d offset:%d" % (vr(ML + 2 * x, 2), vAX + 10 + x, ML_LDS))
    for jp in range(4):
        for x in range(1, 4):
            p("ds_read_b128 %s, v%d offset:%d" % (vr(X(x, jp), 4), vAX + 5 + x, 16384 * (x - 1) + 1024 * jp))
        if jp == 2:
            p("s_waitcnt lgkmcnt(%d)" % (0 if diag == 2 else 9))
            c("weights of the four partial results: 2^(max_w - max) / sum_w(2^(max_w - max) sum_w)")
            p("v_max3_f32 v%d, v%d, v%d, v%d" % (G, ML, ML + 2, ML + 4))
            p("v_max_f32 v%d, v%d, v%d" % (G, G, ML + 6))
    for w in range(4):
        p("v_sub_f32 v%d, v%d, v%d" % (ML + 2 * w, ML + 2 * w, G))
    for w in range(4):
        p("v_exp_f32 v%d, v%d" % (ML + 2 * w, ML + 2 * w))
    p("v_mul_f32 v%d, v%d, v%d" % (G, ML, ML + 1))
    for w in range(1, 4):
        p("v_fma_f32 v%d, v%d, v%d, v%d" % (G, ML + 2 * w, ML + 2 * w + 1, G))
    p("v_rcp_f32 v%d, v%d" % (G, G))
    for w in range(4):
        p("v_mul_f32 v%d, v%d, v%d" % (ML + 2 * w, ML + 2 * w, G))
    for j in range(8):
        p("v_pk_mul_f32 %s, %s, %s op_sel_hi:[1,0]" % (vr(O(0, j), 2), vr(O(0, j), 2), vr(ML, 2)))
    for jp in range(4):
        for x in range(1, 4):
            p("s_waitcnt lgkmcnt(%d)" % (11 - 3 * jp - (x - 1)))
            for k in range(2):
                o = O(0, 2 * jp + k)
                p("v_pk_fma_f32 %s, %s, %s, %s op_sel_hi:[1,0,1]" % (vr(o, 2), vr(X(x, jp) + 2 * k, 2), vr(ML + 2 * x, 2), vr(o, 2)))
        for r in range(2):
            p("v_cvt_pk_bf16_f32 v%d, v%d, v%d" % (vP + 4 * r + jp, O(0, 2 * jp) + r, O(0, 2 * jp + 1) + r))
    if OWN >= 2:
        for k in range(4):
            p("v_permlane16_swap_b32 v%d, v%d" % (vP + k, vP + 4 + k))
        for k in range(4):
            p("v_permlane32_swap_b32 v%d, v%d" % (vP + k, vP + 4 + k))
    src = (vP, vP + 4)
    if OWN == 3:
        src = (vS, vS + 4)
        p("s_mov_b32 vcc_lo, 0x00ff00ff")
        p("s_mov_b32 vcc_hi, 0x00ff00ff")
        for k in range(4):
            p("v_cndmask_b32_dpp v%d, v%d, v%d, vcc row_ror:8 row_mask:0xf bank_mask:0xf" % (vS + k, vP + 4 + k, vP + k))
        p("s_not_b64 vcc, vcc")
        for k in range(4):
            p("v_cndmask_b32_dpp v%d, v%d, v%d, vcc row_ror:8 row_mask:0xf bank_mask:0xf" % (vS + 4 + k, vP + k, vP + 4 + k))
    for r in range(2):
        p("buffer_store_dwordx4 %s, v%d, %s, 0 offen offset:%d %s" % (vr(src[r], 4), vAO, srd(sO), (16, 16, 64, 2048)[OWN] * r, OFL))
    if diag:
        st()
        p("s_waitcnt vmcnt(0)")
        p("s_memrealtime s[44:45]")
        p("s_getreg_b32 s46, hwreg(HW_REG_XCC_ID)")
        p("s_waitcnt lgkmcnt(0)")
        p("s_mov_b32 s47, 0")
        if RK:
            p("s_mov_b32 s47, s90")
            p("s_lshl_b32 s62, s62, 8")
            p("s_or_b32 s46, s46, s62")
        p("s_mov_b32 s56, s60\ns_mov_b32 s57, s61\ns_mov_b32 s58, 32768\ns_mov_b32 s59, 0x20000")
        for k in range(8):
            p("v_mov_b32 v%d, s%d" % (16 + k, 40 + k))
        p("s_lshl_b32 s33, s2, 7")
        p("s_lshr_b32 s36, s36, 6")
        p("s_add_u32 s33, s33, s36")
        p("v_mov_b32 v12, s33")
        p("v_cmp_eq_u32 vcc, 0, v%d" % vLane)
        p("s_and_saveexec_b64 s[50:51], vcc")
        p("buffer_store_dwordx4 v[16:19], v12, s[56:59], 0 offen")
        p("buffer_store_dwordx4 v[20:23], v12, s[56:59], 0 offen offset:16")
        if diag == 2:
            p("s_mov_b32 s58, 0x100000")
            p("v_add_u32 v12, 0x80000, v12")
            for k in range(6):
                p("v_mov_b32 v%d, s%d" % (24 + k, 64 + 2 * k))
            p("buffer_store_dwordx4 v[24:27], v12, s[56:59], 0 offen")
            p("buffer_store_dwordx2 v[28:29], v12, s[56:59], 0 offen offset:16")
    p("L_end:")
    p("s_endpgm")
    p.fix_hazards()
    trips = {"L_loop": [True] * (NT - 2 - npeel) + [False]}
    p.check_waits(trips)
    if FB or RK:
        t2 = dict(trips)
        for n in range(1, lab[0] + 1):
            t2["L_ri%d" % n] = [True] * 40
        p.check_waits(t2)
        t3 = dict(trips, L_f1=[True] * 40, L_f2=[True] * 40, L_f3=[True] * 40)
        for n in range(1, lab[0] + 1):
            t3["L_ca%d" % n] = [True] * 40
        p.check_waits(t3)
    lds = 131072 if (KD >= 2 or B14 or FB or RK) else (126976 if NR else 94208)
    return HEADER.replace("lds=131072", "lds=%d" % lds) + p.text() + FOOTER.format(nfv=acc + nA, nfs=96 if diag else (64 if (FB or RK) else 40), acc=acc)


if __name__ == "__main__":
    import argparse
    ap = argparse.ArgumentParser()
    ap.add_argument("-o")
    ap.add_argument("--hw", type=int, default=5)
    ap.add_argument("--own", type=int, default=0)
    ap.add_argument("--ofl", default="")
    ap.add_argument("--kd", type=int, default=1)
    ap.add_argument("--diag", type=int, nargs="?", const=1, default=0)
    ap.add_argument("--b14", action="store_true")
    ap.add_argument("--first", type=int, default=0)
    ap.add_argument("--nr", type=int, default=5)
    ap.add_argument("--dum", type=int, default=0)
    ap.add_argument("--rk", default=None)
    ap.add_argument("--fb", default=None)
    ap.add_argument("--hwr", type=int, default=None)
    ap.add_argument("--deep", type=int, default=0)
    ap.add_argument("--last", default="r")
    ap.add_argument("--ord", default="KV")
    ap.add_argument("--hwl", type=int, default=None)
    a = ap.parse_args()
    open(a.o, "w").write(gen(a.hw, a.own, a.ofl, a.kd, a.diag, a.last, a.ord, a.hwl, a.b14, a.first, a.deep, a.nr, a.hwr, tuple(int(x) for x in a.fb.split(',')) if a.fb else None, (tuple(int(x) for x in a.rk.split(',')[:4]) + (a.rk.split(',')[4],)) if a.rk else None, a.dum))
```

```python
import math
import sys
from asmlib import Prog
from gen1 import f32, vr, ar

HEADER = """; GQA attention forward, B=32 Hq=32 Hkv=8 Sq=8 Sk=2048 D=128, bf16 in / bf16 out (HBM-bound: 256 MiB of K/V).
;
; @launch grid=(256,1,1) block=(256,1,1) lds=131072
.amdgcn_target "amdgcn-amd-amdhsa--gfx950"
.text
.globl standalone__gqa_softmax__sampling_kernel
.p2align 8
.type standalone__gqa_softmax__sampling_kernel,@function
standalone__gqa_softmax__sampling_kernel:
"""
FOOTER = """.section .rodata,"a"
.p2align 6
.amdhsa_kernel standalone__gqa_softmax__sampling_kernel
  .amdhsa_next_free_vgpr {nfv}
  .amdhsa_next_free_sgpr {nfs}
  .amdhsa_accum_offset {acc}
  .amdhsa_group_segment_fixed_size 0
  .amdhsa_kernarg_size 48
  .amdhsa_user_sgpr_count 2
  .amdhsa_user_sgpr_kernarg_segment_ptr 1
  .amdhsa_system_sgpr_workgroup_id_x 1
  .amdhsa_float_denorm_mode_32 3
.end_amdhsa_kernel
"""


def gen(HW=5, OWN=0, OFL='', KD=0, diag=False, LAST='r', ORD='KV', HWL=None, B14=False, FIRST=0, DEEP=0, NR=0, HWR=None, FB=None, RK=None, DUM=0):
    p = Prog()
    c = lambda t: p("; " + t)
    NT, STEP = 16, 32768
    C = 128 ** -0.5 * math.log2(math.e)
    sK, sV, sQ, sO = 12, 16, 20, 24
    sC, sLo, sHi, sOffK, sOffV = 28, 29, 30, 31, 32
    vK, vV0, vQ, vDma, vLane = 1, 3, 5, 6, 7
    vM, vL, vT, vNM, vAl, vAW, vAO = 8, 10, 12, 20, 22, 26, 27
    vS, vP, vVT, vO, vVb = 28, 44, 52, 84, 148
    vAX = 180
    vKD = vAX + 14
    vKq = vKD + 8
    nV = vKq + 4 if (KD >= 2 or RK) else (vKq if KD else vKD)
    HWL = HW if HWL is None else HWL
    KL = 61440
    aQ, aK, aKx = 0, 32, 64
    nA = aKx + (0 if KD else 16)
    acc = (nV + 3) // 4 * 4
    QL, ML_LDS = 53248, 49152
    S = lambda t, h: vS + (t * 2 + h) * 4
    O = lambda h, j: vO + (h * 8 + j) * 4
    Kb = lambda t, i, x=False: (aKx if x else aK + 16 * t) + 4 * i
    Vb = lambda e: vVb + 4 * e
    Qf = lambda h, i: aQ + (h * 4 + i) * 4
    VT = lambda j, u: vVT + 4 * j + u
    srd = lambda s: "s[%d:%d]" % (s, s + 3)
    al = (vAl, vAl + 2)

    def kdma_addr():
        c("K staged in LDS as whole rows: slot s of row 4k+g holds its 16-byte chunk s ^ (4g + (k&3))")
        p("v_bfe_u32 v%d, v%d, 4, 2" % (vKD + 4, vLane))
        p("v_lshlrev_b32 v%d, 2, v%d" % (vKD + 5, vKD + 4))
        p("v_xor_b32 v%d, v%d, v%d" % (vKD + 5, vKD + 5, vLane))
        p("v_and_b32 v%d, 15, v%d" % (vKD + 5, vKD + 5))
        p("v_and_b32 v%d, 0x6000, v%d" % (vKD + 6, vK))
        p("v_lshl_add_u32 v%d, v%d, 8, v%d" % (vKD + 6, vKD + 4, vKD + 6))
        p("v_lshl_add_u32 v%d, v%d, 4, v%d" % (vKD, vKD + 5, vKD + 6))
        for k in range(1, 4):
            p("v_xor_b32 v%d, %d, v%d" % (vKD + k, 16 * k, vKD))
        p("v_xor_b32 v%d, v%d, v%d" % (vKD + 4, vKD + 4, vLane))
        p("v_and_b32 v%d, 15, v%d" % (vKD + 4, vKD + 4))
        p("v_and_b32 v%d, 0x7f00, v%d" % (vKD + 5, vK))
        p("v_add_u32 v%d, %d, v%d" % (vKD + 5, KL + (32768 if KD >= 2 else 0), vKD + 5))
        p("v_lshl_add_u32 v%d, v%d, 4, v%d" % (vKD + 4, vKD + 4, vKD + 5))
        for i in range(1, 4):
            p("v_xor_b32 v%d, %d, v%d" % (vKD + 4 + i, 64 * i, vKD + 4))

    def kdma():
        KL2 = KL + (32768 if KD >= 2 else 0)
        p("s_lshl_b32 s38, s36, 2")
        for t in range(2):
            p("s_add_u32 m0, s38, %d" % (KL2 + 4096 * t))
            if t:
                p("s_add_u32 s%d, s%d, 4096" % (sOffK, sOffK))
            for k in range(4):
                p("buffer_load_dwordx4 v%d, %s, s%d offen offset:%d nt lds" % (vKD + k, srd(sK), sOffK, 1024 * k))

    def kdma_read(t):
        for i in range(4):
            p("ds_read_b128 %s, v%d offset:%d" % (ar(Kb(t, i), 4), vKD + 4 + i, 4096 * t))

    c("registers: s[12:15] K, s[16:19] V, s[20:23] Q, s[24:27] out descriptors; s28 = log2(e)/sqrt(128); s29/s30 v_perm selectors;")
    c("  s31/s32 byte offset of the tile being fetched (K / V)")
    c("  v1,v2 K lane offsets (key half 0/1); v3,v4 V lane offsets; v8,v9 running max; v10,v11 running sum (per q half)")
    c("  v28-43 scores; v44-51 packed P; v52-83 transposed V; v84-147 O^T accumulators; v148-179 V tile")
    c("  v180-193 LDS addresses of the merge; v194-201 memory offsets and LDS addresses of the staged K tiles")
    c("  a0-31 Q fragments; a32-63 K tile")
    c("LDS: 0-48K partial outputs, 48K (max, sum) slots, 52K-60K Q, 60K-92K last K tile, 92K-124K staged K units (8 KiB per wave each)")
    p("s_load_dwordx8 s[4:11], s[0:1], 0")
    p("s_cmp_ge_u32 s2, 256")
    p("s_cbranch_scc1 L_end")
    if diag:
        p("s_memrealtime s[40:41]")
        p("s_load_dwordx2 s[60:61], s[0:1], 40")
    if FB or RK:
        p("s_load_dwordx2 s[48:49], s[0:1], 32")
    c("block index and per-lane offsets (lane = 16g + n, wave = 2*hb + rb)")
    p("s_and_b32 s33, s2, 7")
    p("s_lshr_b32 s35, s2, 3")
    p("s_lshl_b32 s33, s33, 5")
    p("s_or_b32 s33, s33, s35")
    p("s_lshl_b32 s35, s33, 19")
    p("s_lshl_b32 s33, s33, 13")
    p("v_lshrrev_b32 v14, 6, v0              ; wave")
    p("v_and_b32 v%d, 63, v0" % vLane)
    p("v_lshlrev_b32 v15, 13, v14")
    c("K: lane reads key row 4*(n&3) + (n>>2), bytes 16g + 64i; this row order makes V's rows come out contiguous")
    p("v_and_b32 v16, 3, v0")
    p("v_bfe_u32 v17, v0, 2, 2")
    p("v_lshl_add_u32 v16, v16, 2, v17")
    p("v_lshl_add_u32 v16, v16, 8, v15")
    p("v_and_b32 v17, 0x30, v0               ; 16 g")
    p("v_add_u32 v%d, v16, v17" % vK)
    p("v_add_u32 v%d, 4096, v%d" % (vK + 1, vK))
    c("waves 2,3 hold the two q halves swapped, odd waves hold the d chunks with bit 1 flipped: the quarter of the")
    c("output a wave finishes itself then sits in the same registers for every wave")
    p("v_and_b32 v16, 15, v0")
    p("v_lshl_add_u32 v16, v16, 8, v17")
    p("v_bfe_u32 v18, v0, 7, 1               ; hb")
    p("v_lshl_add_u32 v%d, v18, 12, v16" % vQ)
    c("Q goes to LDS once (2 KiB per wave), 16-byte chunks xor-swizzled by row so the fragment reads are conflict-free")
    p("v_lshrrev_b32 v19, 4, v%d" % vLane)
    p("v_lshl_add_u32 v19, v14, 3, v19")
    p("v_xor_b32 v20, v19, v0")
    p("v_and_b32 v20, 15, v20")
    p("v_lshlrev_b32 v20, 4, v20")
    p("v_lshl_add_u32 v%d, v19, 8, v20" % vDma)
    p("v_xor_b32 v21, 64, v%d                ; four rows further down" % vDma)
    p("v_readfirstlane_b32 s36, v14")
    p("s_lshl_b32 s36, s36, 11")
    p("s_add_u32 m0, s36, %d" % QL)
    c("V: whole rows, lane = 16-byte chunk")
    p("v_bfe_u32 v18, v0, 6, 1               ; rb")
    if OWN == 0:
        p("v_lshlrev_b32 v19, 1, v18")
        p("v_xor_b32 v19, v19, v%d" % vLane)
        p("v_lshl_add_u32 v%d, v19, 4, v15" % vV0)
    else:
        p("v_bfe_u32 v19, v0, 1, 1")
        p("v_xor_b32 v19, v19, v18")
        p("v_lshl_add_u32 v19, v19, 7, v15")
        p("v_bfe_u32 v20, v0, 2, 2")
        p("v_lshl_add_u32 v19, v20, 5, v19")
        p("v_and_b32 v20, 1, v0")
        p("v_lshl_add_u32 v19, v20, 4, v19")
        p("v_lshl_add_u32 v%d, v17, 4, v19" % vV0)
    p("v_add_u32 v%d, 4096, v%d" % (vV0 + 1, vV0))
    if KD >= 2:
        c("K through LDS: a load covers 16 rows x 64 B, lane = 4*row + piece; pieces are xor-swizzled by 3*(row>>3)")
        p("v_bfe_u32 v19, v0, 2, 2               ; m & 3")
        p("v_bfe_u32 v20, v0, 4, 2               ; m >> 2")
        p("v_lshl_add_u32 v19, v19, 2, v20")
        p("v_lshl_add_u32 v19, v19, 8, v15")
        p("v_bfe_i32 v20, v0, 5, 1               ; -(m >> 3)")
        p("v_xor_b32 v20, v20, v0")
        p("v_and_b32 v20, 3, v20")
        p("v_lshl_add_u32 v%d, v20, 4, v19" % vKq)
        p("v_add_u32 v%d, 4096, v%d" % (vKq + 1, vKq))
        p("s_lshl_b32 s37, s36, 2")
        p("s_add_u32 s37, s37, %d" % KL)
    if FIRST:
        kdma_addr()
        p("s_lshl_b32 s38, s36, 2")
    if FB:
        C0, G, Bias, NMAX, NDEF, DL = FB
        kdma_addr()
        p("s_lshl_b32 s38, s36, 2")
        p("s_mov_b32 s50, 1")
        p("s_mov_b32 s51, %d" % (30 - NDEF))
        p("s_mov_b32 s52, 0")
        p("s_cmp_eq_u32 s36, 0")
        p("s_cselect_b32 s54, %d, -1" % (STEP * C0))
        p("s_cselect_b32 s55, %d, -1" % (STEP * (C0 + DL)))
        p("v_mov_b32 v22, %d" % (51200))
        p("v_mov_b32 v23, s51")
        p("ds_write_b32 v22, v23")
    if RK:
        p("v_mov_b32 v22, 51200")
        p("v_mov_b32 v23, %d" % (30 - RK[1]))
        p("ds_write_b32 v22, v23")
    for s, size in ((sK, 524288), (sV, 524288), (sQ, 8192), (sO, 8192)):
        p("s_mov_b32 s%d, %d" % (s + 2, size))
        p("s_mov_b32 s%d, 0x20000" % (s + 3))
    p("s_mov_b32 s%d, 0" % sOffK)
    p("s_mov_b32 s%d, 0" % sOffV)
    p("s_waitcnt lgkmcnt(0)")

    def mk(s, lo, sh):
        p("s_add_u32 s%d, s%d, s%d" % (s, lo, sh))
        p("s_addc_u32 s%d, s%d, 0" % (s + 1, lo + 1))

    def load_k(t, x=False):
        for i in range(4):
            p("buffer_load_dwordx4 %s, v%d, %s, s%d offen offset:%d nt" % (ar(Kb(t, i, x), 4), vK + t, srd(sK), sOffK, 64 * i))

    def load_v(t):
        for r in range(4):
            p("buffer_load_dwordx4 %s, v%d, %s, s%d offen offset:%d nt" % (vr(Vb(4 * t + r), 4), vV0 + t, srd(sV), sOffV, 1024 * r))

    def step_off(s):
        p("s_add_u32 s%d, s%d, %d" % (s, s, STEP))

    wait = lambda n: p("s_waitcnt vmcnt(%d)" % n)
    nst = [0]
    mid = [False]
    NRv = [NR]
    inloop = [False]

    def st():
        if diag == 2:
            p("s_memrealtime s[%d:%d]" % (64 + 2 * nst[0], 65 + 2 * nst[0]))
            nst[0] += 1

    def load_kq(t, i, last=False):
        p("s_add_u32 m0, s37, %d" % (4096 * t + 960 * i + (32768 if last else 0)))
        p("buffer_load_dwordx4 v%d, %s, s%d offen offset:%d nt lds" % (vKq + t, srd(sK), sOffK, 64 * i))

    lab = [0]

    def unit(t):
        if FB and inloop[0]:
            lab[0] += 1
            n = lab[0]
            p("s_mov_b32 s53, s52")
            p("s_cmp_ge_u32 s50, s51")
            p("s_cselect_b32 s52, 1, 0")
            p("s_cbranch_scc1 L_ri%d" % n)
            load_k(t)
            p("s_branch L_rj%d" % n)
            p("L_ri%d:" % n)
            p("s_add_u32 m0, s38, %d" % (KL + 32768 + 4096 * t))
            p("s_add_u32 s39, s%d, %d" % (sOffK, 4096 * t))
            for k in range(4):
                p("buffer_load_dwordx4 v%d, %s, s39 offen offset:%d nt lds" % (vKD + k, srd(sK), 1024 * k))
            p("L_rj%d:" % n)
            load_v(t)
            p("s_add_u32 s50, s50, 1")
            return
        if KD < 2:
            load_k(t)
            load_v(t)
            return
        lv = lambda r: p("buffer_load_dwordx4 %s, v%d, %s, s%d offen offset:%d nt" % (vr(Vb(4 * t + r), 4), vV0 + t, srd(sV), sOffV, 1024 * r))
        if ORD == "KV":
            for i in range(4):
                load_kq(t, i)
            for r in range(4):
                lv(r)
        elif ORD == "VK":
            for r in range(4):
                lv(r)
            for i in range(4):
                load_kq(t, i)
        else:
            for i in range(4):
                load_kq(t, i)
                lv(i)

    def read_kq(t, last=False):
        for i in range(4):
            p("ds_read_b128 %s, v%d offset:%d" % (ar(Kb(t, i), 4), vKq + 2, 4096 * t + 1024 * i + (32768 if last else 0)))

    def consume(t, us):
        if FB:
            lab[0] += 1
            n = lab[0]
            wait(12)
            p("s_cmp_eq_u32 s53, 0")
            p("s_cbranch_scc1 L_ca%d" % n)
            for i in range(4):
                p("ds_read_b128 %s, v%d offset:%d" % (ar(Kb(t, i), 4), vKD + 4 + i, 32768 + 4096 * t))
            wait(8)
            perms(range(8), us)
            p("s_waitcnt lgkmcnt(0)")
            qk(t)
            p("s_branch L_cb%d" % n)
            p("L_ca%d:" % n)
            qk(t)
            wait(8)
            perms(range(8), us)
            p("L_cb%d:" % n)
            return
        if KD < 2:
            wait(12)
            if FIRST and t == 0 and not mid[0]:
                p("L_mid:")
                mid[0] = True
            qk(t)
            wait(8)
            perms(range(8), us)
        elif ORD == "KV":
            wait(12)
            read_kq(t)
            wait(8)
            perms(range(8), us)
            p("s_waitcnt lgkmcnt(0)")
            qk(t)
        else:
            wait(8)
            read_kq(t)
            perms(range(8), us)
            p("s_waitcnt lgkmcnt(0)")
            qk(t)

    c("first loads: Q share, then the first unit (keys 0-15 of tile 0)")
    mk(sQ, 4, 33)
    p("buffer_load_dwordx4 v%d, %s, 0 offen nt lds" % (vDma, srd(sQ)))
    p("buffer_load_dwordx4 v21, %s, 0 offen offset:1024 nt lds" % srd(sQ))
    mk(sK, 6, 35)
    if FIRST:
        p("s_add_u32 m0, s38, %d" % KL)
        mk(sV, 8, 35)
        for k in range(4):
            p("buffer_load_dwordx4 v%d, %s, s%d offen offset:%d nt lds" % (vKD + k, srd(sK), sOffK, 1024 * k))
        if FIRST == 2:
            p("s_add_u32 m0, s38, %d" % (KL + 4096))
            p("s_mov_b32 s39, 4096")
        load_v(0)
    else:
        mk(sV, 8, 35)
        unit(0)
    mk(sO, 10, 33)
    p("s_mov_b32 s%d, %s" % (sC, f32(C)))
    p("s_mov_b32 s%d, 0x05040100" % sLo)
    p("s_mov_b32 s%d, 0x07060302" % sHi)
    p("v_lshlrev_b32 v15, 12, v14")
    p("v_lshl_add_u32 v%d, v%d, 3, v15       ; wave*4096 + lane*8" % (vAW, vLane))
    p("v_and_b32 v16, 0x1f00, v%d" % vQ)
    if OWN == 0:
        p("v_lshlrev_b32 v17, 2, v17")
        p("v_lshl_add_u32 v17, v18, 5, v17")
    elif OWN == 1:
        p("v_lshlrev_b32 v17, 1, v17")
        p("v_lshl_add_u32 v17, v18, 7, v17")
    elif OWN == 2:
        p("v_lshl_add_u32 v17, v18, 7, v17")
    else:
        p("v_and_b32 v16, 0x1700, v16")
        p("v_lshl_add_u32 v17, v18, 7, v17")
        p("v_bfe_u32 v19, v0, 3, 1")
        p("v_lshl_add_u32 v17, v19, 6, v17")
    p("v_add_u32 v%d, v16, v17               ; output offset" % vAO)
    if KD >= 2:
        p("v_bfe_i32 v16, v0, 3, 1               ; -(n >> 3)")
        p("v_lshrrev_b32 v17, 4, v0")
        p("v_xor_b32 v16, v16, v17")
        p("v_and_b32 v16, 3, v16")
        p("v_lshlrev_b32 v16, 4, v16")
        p("v_and_b32 v17, 15, v0")
        p("v_lshl_add_u32 v16, v17, 6, v16")
        p("v_add_u32 v%d, s37, v16" % (vKq + 2))
    c("softmax state: max = -3e38 (its first rescale factor is 0), sum = 0, accumulators = 0")
    for h in range(2):
        p("v_mov_b32 v%d, 0xff61b1e6" % (vM + h))
        p("v_mov_b32 v%d, 0" % (vL + h))
    for i in range(0, 64, 2):
        p("v_pk_mul_f32 %s, %s, 0 op_sel_hi:[1,0]" % (vr(vO + i, 2), vr(vL, 2)))
    wait(8)
    p("s_barrier")
    c("Q fragments: lane (n, g) of fragment (h, i) = row 16h+n, chunk 4i+g")
    p("v_and_b32 v16, 15, v0")
    p("v_bfe_u32 v17, v0, 4, 2")
    p("v_xor_b32 v17, v17, v16")
    p("v_lshlrev_b32 v17, 4, v17")
    p("v_and_b32 v16, 0x1f00, v%d" % vQ)
    p("v_add_u32 v%d, v16, v17" % vS)
    for k in range(1, 8):
        p("v_xor_b32 v%d, %d, v%d" % (vS + k, 4096 * (k // 4) + 64 * (k % 4), vS))
    for h in range(2):
        for i in range(4):
            p("ds_read_b128 %s, v%d offset:%d" % (ar(Qf(h, i), 4), vS + 4 * h + i, QL))
    p("s_waitcnt lgkmcnt(0)")

    def qk(t, x=False):
        for i in range(4):
            for h in range(2):
                p("v_mfma_f32_16x16x32_bf16 %s, %s, %s, %s" % (vr(S(t, h), 4), ar(Kb(t, i, x), 4), ar(Qf(h, i), 4), "0" if i == 0 else vr(S(t, h), 4)))

    def perms(js, us):
        for j in js:
            for u in us:
                p("v_perm_b32 v%d, v%d, v%d, s%d" % (VT(j, u), Vb(2 * u + 1) + j // 2, Vb(2 * u) + j // 2, sHi if j & 1 else sLo))

    def mf(js, hs=(0, 1)):
        for j in js:
            for h in hs:
                p("v_mfma_f32_16x16x32_bf16 %s, %s, %s, %s" % (vr(O(h, j), 4), vr(VT(j, 0), 4), vr(vP + 4 * h, 4), vr(O(h, j), 4)))

    def softmax():
        c("online softmax: tile max (in lane, then across the four lane groups), new running max")
        for h in range(2):
            x, y = S(0, h), S(1, h)
            p("v_max3_f32 v%d, v%d, v%d, v%d" % (vT + h, x, x + 1, x + 2))
            p("v_max3_f32 v%d, v%d, v%d, v%d" % (vT + 2 + h, x + 3, y, y + 1))
            p("v_max3_f32 v%d, v%d, v%d, v%d" % (vT + h, y + 2, y + 3, vT + h))
            p("v_max3_f32 v%d, v%d, v%d, v%d" % (vT + h, vT + h, vT + 2 + h, vM + h))
        p("v_permlane32_swap_b32 v%d, v%d" % (vT, vT + 1))
        p("v_max_f32 v%d, v%d, v%d" % (vT, vT, vT + 1))
        p("v_mov_b32 v%d, v%d" % (vT + 1, vT))
        p("v_permlane16_swap_b32 v%d, v%d" % (vT, vT + 1))
        p("v_max_f32 v%d, v%d, v%d" % (vT, vT, vT + 1))
        p("v_mov_b32 v%d, v%d" % (vT + 1, vT))
        p("v_permlane32_swap_b32 v%d, v%d" % (vT, vT + 1))
        c("alpha = 2^((old - new) c), p = 2^(s c - new c)")
        for h in range(2):
            p("v_mul_f32 v%d, s%d, v%d" % (vNM + h, sC, vT + h))
        for h in range(2):
            p("v_fma_f32 v%d, v%d, s%d, -v%d" % (al[h], vM + h, sC, vNM + h))
        for h in range(2):
            p("v_mov_b32 v%d, v%d" % (vM + h, vT + h))
        for h in range(2):
            p("v_exp_f32 v%d, v%d" % (al[h], al[h]))
        regs = [(S(t, h) + r, h) for h in range(2) for t in range(2) for r in range(4)]
        for x, h in regs:
            p("v_fma_f32 v%d, v%d, s%d, -v%d" % (x, x, sC, vNM + h))
        for x, h in regs:
            p("v_exp_f32 v%d, v%d" % (x, x))
        c("rescale the accumulators, pack P, update the row sums")
        for h in range(2):
            for k in range(0, 32, 2):
                x = O(h, 0) + k
                p("v_pk_mul_f32 %s, %s, %s op_sel_hi:[1,0]" % (vr(x, 2), vr(x, 2), vr(al[h], 2)))
        for h in range(2):
            for k, x in enumerate((S(0, h), S(0, h) + 2, S(1, h), S(1, h) + 2)):
                p("v_cvt_pk_bf16_f32 v%d, v%d, v%d" % (vP + 4 * h + k, x, x + 1))
        for h in range(2):
            x, y = S(0, h), S(1, h)
            p("v_pk_add_f32 %s, %s, %s" % (vr(x, 2), vr(x, 2), vr(x + 2, 2)))
            p("v_pk_add_f32 %s, %s, %s" % (vr(y, 2), vr(y, 2), vr(y + 2, 2)))
        for h in range(2):
            p("v_pk_add_f32 %s, %s, %s" % (vr(S(0, h), 2), vr(S(0, h), 2), vr(S(1, h), 2)))
        for h in range(2):
            p("v_fma_f32 v%d, v%d, v%d, v%d" % (vL + h, vL + h, al[h], S(0, h)))
        for h in range(2):
            p("v_add_f32 v%d, v%d, v%d" % (vL + h, vL + h, S(0, h) + 1))

    def tile(before_last):
        c("step A: unit a (keys 0-15) is landing; fetch unit b (keys 16-31), then consume a")
        if before_last and KD and LAST == "r" and not FIRST and not FB:
            kdma_addr()
        wait(HW)
        if before_last and B14:
            p("s_lshl_b32 s38, s36, 1")
            p("s_add_u32 m0, s38, %d" % (KL + 32768))
            p("s_add_u32 s39, s%d, 4096" % sOffK)
            for k in range(4):
                p("buffer_load_dwordx4 v%d, %s, s39 offen offset:%d nt lds" % (vKD + k, srd(sK), 1024 * k))
            load_v(1)
        else:
            unit(1)
        step_off(sOffK)
        step_off(sOffV)
        if before_last and DEEP:
            if DEEP == 2:
                wait(8 + HW)
            kdma()
            n = 8 if DEEP == 1 else 8
            wait(12 + n)
            qk(0)
            wait(8 + n)
            perms(range(8), (0, 1))
            c("step B: fetch the first half of the last V tile, finish tile 14")
            wait(HW + 8)
            load_v(0)
            wait(16)
            qk(1)
            wait(12)
            perms(range(8), (2, 3))
            load_v(1)
            softmax()
            mf(range(8))
            return
        consume(0, (0, 1))
        if not before_last:
            c("step B: unit b is landing; fetch unit a of the next tile, then finish this tile")
            wait(HW)
            unit(0)
        else:
            c("step B: the last tile is fetched K first, V second, so that its softmax runs while V is in flight")
            wait(HW)
            if KD and LAST == "r":
                if FB:
                    p("s_mov_b32 s53, s52")
                kdma()
            elif KD:
                for t in range(2):
                    for i in range(4):
                        load_kq(t, i, True)
            else:
                load_k(0)
                load_k(1, True)
        if before_last and B14:
            p("v_and_b32 v%d, 0x6000, v%d" % (vT + 4, vK))
            p("v_lshrrev_b32 v%d, 1, v%d" % (vT + 4, vT + 4))
            p("v_sub_u32 v%d, 32768, v%d" % (vT + 4, vT + 4))
            for i in range(4):
                p("v_add_u32 v%d, v%d, v%d" % (vS + 8 + i, vKD + 4 + i, vT + 4))
            wait(12)
            for i in range(4):
                p("ds_read_b128 %s, v%d" % (ar(Kb(1, i), 4), vS + 8 + i))
            wait(8)
            perms(range(8), (2, 3))
            p("s_waitcnt lgkmcnt(0)")
            qk(1)
        else:
            consume(1, (2, 3))
        softmax()
        c("O^T += V^T P^T")
        mf(range(8))

    def runit(half):
        p("s_add_u32 m0, s38, %d" % (KL + 32768 + 4096 * half))
        if half:
            p("s_add_u32 s39, s%d, 4096" % sOffK)
        else:
            p("s_mov_b32 s39, s%d" % sOffK)
        for k in range(4):
            p("buffer_load_dwordx4 v%d, %s, s39 offen offset:%d nt lds" % (vKD + k, srd(sK), 1024 * k))
        load_v(half)

    def rconsume(half):
        wait(12)
        for i in range(4):
            p("ds_read_b128 %s, v%d offset:%d" % (ar(Kb(half, i), 4), vKD + 4 + i, 32768 + 4096 * half))
        wait(8)
        perms(range(8), (0, 1) if half == 0 else (2, 3))
        p("s_waitcnt lgkmcnt(0)")
        qk(half)

    def dyn_issue(half, then=None):
        lab[0] += 1
        n = lab[0]
        p("s_mov_b32 s53, s52")
        p("s_cmp_ge_u32 s50, s51")
        p("s_cselect_b32 s52, 1, 0")
        p("s_cbranch_scc1 L_ri%d" % n)
        load_k(half)
        p("s_branch L_rj%d" % n)
        p("L_ri%d:" % n)
        p("s_add_u32 m0, s38, %d" % (KL + 32768 + 4096 * half))
        p("s_add_u32 s39, s%d, %d" % (sOffK, 4096 * half))
        for k in range(4):
            p("buffer_load_dwordx4 v%d, %s, s39 offen offset:%d nt lds" % (vKD + k, srd(sK), 1024 * k))
        p("L_rj%d:" % n)
        load_v(half)
        p("s_add_u32 s50, s50, 1")

    def dyn_consume(half):
        lab[0] += 1
        n = lab[0]
        us = (0, 1) if half == 0 else (2, 3)
        wait(12)
        p("s_cmp_eq_u32 s53, 0")
        p("s_cbranch_scc1 L_ca%d" % n)
        for i in range(4):
            p("ds_read_b128 %s, v%d offset:%d" % (ar(Kb(half, i), 4), vKD + 4 + i, 32768 + 4096 * half))
        wait(8)
        perms(range(8), us)
        p("s_waitcnt lgkmcnt(0)")
        qk(half)
        p("s_branch L_cb%d" % n)
        p("L_ca%d:" % n)
        qk(half)
        wait(8)
        perms(range(8), us)
        p("L_cb%d:" % n)

    def tile_rk(T):
        C0, NDEF, T1, T2, PFL = RK
        c("---------------- tile %d" % T)
        def dbg_srd():
            p("s_mov_b32 s44, s48")
            p("s_and_b32 s45, s49, 0xffff")
            p("s_mov_b32 s46, 256")
            p("s_mov_b32 s47, 0x20000")
            p("s_and_b32 s56, s2, 7")
            p("s_lshl_b32 s56, s56, 5")
        if T == C0 - 1:
            c("bring the group's line into this die's L2 ahead of the checkpoint")
            dbg_srd()
            p("v_cmp_eq_u32 vcc, 0, v0")
            p("v_mov_b32 v%d, 0x1000" % vKq)
            p("v_cndmask_b32_e64 v%d, v%d, 0, vcc" % (vKq, vKq))
            p("buffer_load_dword v%d, v%d, s[44:47], s56 offen" % (vKq + 1, vKq))
            wait(HW + 1)
            unit(1)
            step_off(sOffK)
            step_off(sOffV)
            wait(13)
            qk(0)
            wait(9)
            perms(range(8), (0, 1))
            wait(HW)
            unit(0)
            consume(1, (2, 3))
            softmax()
            mf(range(8))
            return
        if T == C0:
            c("checkpoint: mark this workgroup in its group's byte array and count the marks already there")
            p("s_mov_b32 s44, s48")
            p("s_and_b32 s45, s49, 0xffff")
            p("s_mov_b32 s46, 256")
            p("s_mov_b32 s47, 0x20000")
            p("s_and_b32 s56, s2, 7")
            p("s_lshl_b32 s56, s56, 5")
            p("s_lshr_b32 s57, s2, 3")
            p("s_add_u32 s57, s57, s56")
            p("v_cmp_eq_u32 vcc, 0, v0")
            p("v_mov_b32 v%d, 0x1000" % vKq)
            p("v_mov_b32 v%d, 1" % (vKq + 1))
            p("v_cndmask_b32 v%d, v%d, 0, vcc" % (vKq, vKq) if False else "v_cndmask_b32_e64 v%d, v%d, 0, vcc" % (vKq, vKq))
            if "W" in PFL:
                p("v_lshlrev_b32 v%d, 2, v0" % (vKq + 2))
                p("v_cmp_gt_u32 vcc, 8, v0")
                p("v_mov_b32 v%d, 0x1000" % (vKq + 3))
                p("v_cndmask_b32 v%d, v%d, v%d, vcc" % (vKq + 2, vKq + 3, vKq + 2))
            else:
                p("v_and_b32 v%d, 7, v0" % (vKq + 2))
                p("v_lshlrev_b32 v%d, 2, v%d" % (vKq + 2, vKq + 2))
            p("buffer_store_byte v%d, v%d, s[44:47], s57 offen" % (vKq + 1, vKq))
            p("buffer_load_dword v%d, v%d, s[44:47], s56 offen %s" % (vKq + 2, vKq + 2, PFL.replace('W', '').replace('P', '').replace('S', '')))
            wait(HW + 2)
            unit(1)
            step_off(sOffK)
            step_off(sOffV)
            wait(14)
            qk(0)
            wait(10)
            perms(range(8), (0, 1))
            wait(HW)
            unit(0)
            p("v_sad_u8 v%d, v%d, 0, 0" % (vKq + 2, vKq + 2))
            for sh in (1, 2, 4):
                p("v_add_u32_dpp v%d, v%d, v%d row_shr:%d row_mask:0xf bank_mask:0xf bound_ctrl:1" % (vKq + 2, vKq + 2, vKq + 2, sh))
            p("v_readlane_b32 s56, v%d, 7" % (vKq + 2))
            if diag:
                p("s_mov_b32 s62, s56")
                p("s_memrealtime s[90:91]")
                p("s_waitcnt lgkmcnt(0)")
            p("s_mov_b32 s57, %d" % (30 - NDEF + 2))
            for th in (32 - T2, 32 - T1, T1, T2):
                pass
            for th in (T2 + 1, T1 + 1, 32 - T1, 32 - T2):
                p("s_cmp_ge_u32 s56, %d" % th)
                p("s_subb_u32 s57, s57, 0")
            p("s_cmp_eq_u32 s36, 0")
            p("s_cbranch_scc0 L_nob")
            p("v_mov_b32 v%d, s57" % (vKq + 1))
            p("v_mov_b32 v%d, 51200" % vKq)
            p("ds_write_b32 v%d, v%d" % (vKq, vKq + 1))
            p("L_nob:")
            consume(1, (2, 3))
            softmax()
            mf(range(8))
            p("s_mov_b32 s52, 0")
            p("s_mov_b32 s50, %d" % (2 * C0 + 3))
            kdma_addr()
            p("s_lshl_b32 s38, s36, 2")
            return
        if T == C0 + 1:
            p("v_mov_b32 v%d, 51200" % vKq)
            p("ds_read_b32 v%d, v%d" % (vKq + 1, vKq))
            p("s_waitcnt lgkmcnt(0)")
            p("v_readfirstlane_b32 s51, v%d" % (vKq + 1))
            if diag:
                p("s_lshl_b32 s63, s51, 8")
                p("s_or_b32 s62, s62, s63")
        wait(HW)
        dyn_issue(1)
        step_off(sOffK)
        step_off(sOffV)
        dyn_consume(0)
        wait(HW)
        if T == NT - 2:
            p("s_mov_b32 s53, s52")
            kdma()
        else:
            dyn_issue(0)
        dyn_consume(1)
        softmax()
        mf(range(8))

    def tile_x(T):
        isr = lambda TT, half: 2 * TT + half >= 2 * (NT - 1) - NRv[0]
        c("---------------- tile %d" % T)
        hw = lambda r: HWR if (r and HWR is not None) else HW
        c("step A: fetch unit b%s, consume unit a%s" % (" (K staged)" if isr(T, 1) else "", " (K staged)" if isr(T, 0) else ""))
        wait(hw(isr(T, 0)))
        (runit if isr(T, 1) else unit)(1)
        step_off(sOffK)
        step_off(sOffV)
        if isr(T, 0):
            rconsume(0)
        else:
            consume(0, (0, 1))
        if T == NT - 2:
            c("step B: the last tile is fetched K first, V second, so that its softmax runs while V is in flight")
        else:
            c("step B: fetch unit a of the next tile, finish this tile")
        wait(hw(isr(T, 1)))
        if T == NT - 2:
            kdma()
        else:
            (runit if isr(T + 1, 0) else unit)(0)
        if isr(T, 1):
            rconsume(1)
        else:
            consume(1, (2, 3))
        softmax()
        for i in range(DUM):
            p("v_mov_b32 v%d, 0" % (vT + 6))
        c("O^T += V^T P^T")
        mf(range(8))

    if FIRST:
        c("the first unit's K came through LDS: fetch unit b, read the fragments, join the loop behind its first wait")
        wait(HW)
        unit(1)
        step_off(sOffK)
        step_off(sOffV)
        wait(12)
        kdma_read(0)
        p("s_waitcnt lgkmcnt(0)")
        p("s_branch L_mid")
    c("---------------- tiles 0..%d" % (NT - 3 - (NR // 2 if NR else 0)))
    inloop[0] = True
    p("L_loop:")
    if FB:
        C0, G, Bias, NMAX, NDEF, DL = FB
        c("progress feedback: rank of this workgroup at tile %d decides how many late units use whole-row K loads" % C0)
        p("s_cmp_lg_u32 s%d, s54" % sOffV)
        p("s_cbranch_scc1 L_f1")
        p("s_mov_b32 s56, 1")
        p("s_atomic_add s56, s[48:49], 0 glc")
        p("L_f1:")
        p("s_cmp_lg_u32 s%d, s55" % sOffV)
        p("s_cbranch_scc1 L_f2")
        p("s_waitcnt lgkmcnt(0)")
        p("s_mul_i32 s56, s56, %d" % G)
        p("s_add_i32 s56, s56, %d" % Bias)
        p("s_ashr_i32 s56, s56, 8")
        p("s_max_i32 s56, s56, 0")
        p("s_min_i32 s56, s56, %d" % NMAX)
        p("s_sub_u32 s56, 30, s56")
        p("v_mov_b32 v%d, s56" % (vT + 5))
        p("v_mov_b32 v%d, 51200" % (vT + 4))
        p("ds_write_b32 v%d, v%d" % (vT + 4, vT + 5))
        p("L_f2:")
        p("s_cmp_lg_u32 s%d, %d" % (sOffV, STEP * (C0 + DL + 1)))
        p("s_cbranch_scc1 L_f3")
        p("v_mov_b32 v%d, 51200" % (vT + 4))
        p("ds_read_b32 v%d, v%d" % (vT + 5, vT + 4))
        p("s_waitcnt lgkmcnt(0)")
        p("v_readfirstlane_b32 s51, v%d" % (vT + 5))
        p("L_f3:")
    tile(False)
    npeel = 1 + (NR // 2 if NR else 0)
    if RK:
        npeel = NT - 1 - RK[0] + (1 if "P" in RK[4] else 0)
    p("s_cmp_lt_u32 s%d, %d" % (sOffV, STEP * (NT - 1 - npeel)))
    p("s_cbranch_scc1 L_loop")
    if RK and "S" in RK[4]:
        C0, NDEF, T1, T2, PFL = RK
        for T in range(NT - 1 - npeel, C0 + 1):
            tile_rk(T)
        p("v_mov_b32 v%d, 51200" % vKq)
        p("ds_read_b32 v%d, v%d" % (vKq + 1, vKq))
        p("s_waitcnt lgkmcnt(0)")
        p("v_readfirstlane_b32 s51, v%d" % (vKq + 1))
        if diag:
            p("s_lshl_b32 s63, s51, 8")
            p("s_or_b32 s62, s62, s63")
        opts = sorted(set(range(NDEF - 2, NDEF + 3)) if T2 >= 0 else set(range(NDEF - 1, NDEF + 2)))
        for n in opts:
            if n != NDEF:
                p("s_cmp_eq_u32 s51, %d" % (30 - n))
                p("s_cbranch_scc1 L_path%d" % n)
        order = [NDEF] + [n for n in opts if n != NDEF]
        for k, n in enumerate(order):
            p("L_path%d:" % n)
            NRv[0] = n
            for T in range(C0 + 1, NT - 1):
                tile_x(T)
            if k < len(order) - 1:
                p("s_branch L_t15")
        p("L_t15:")
    elif RK:
        for T in range(NT - 1 - npeel, NT - 1):
            tile_rk(T)
    elif NR:
        kdma_addr()
        p("s_lshl_b32 s38, s36, 2")
        for T in range(NT - 1 - npeel, NT - 1):
            tile_x(T)
    else:
        c("---------------- tile 14")
        tile(True)
    c("---------------- tile 15 and the merge of the four waves")
    if not DEEP:
        wait(HWL)
        load_v(0)
        load_v(1)
    c("LDS addresses of the merge: 6 write areas, 3 read areas, (max, sum) slots")
    p("v_lshlrev_b32 v%d, 3, v%d" % (vAX + 9, vLane))
    p("v_add_u32 v%d, v%d, v%d" % (vAX, vAW, vAX + 9))
    p("v_lshrrev_b32 v%d, 3, v%d" % (vAX + 10, vAW))
    for k in range(1, 6):
        p("v_add_u32 v%d, %d, v%d" % (vAX + k, 16384 * (k // 2) + 2048 * (k % 2), vAX))
    p("v_and_b32 v%d, 0x600, v%d" % (vAX + 10, vAX + 10))
    for x in range(1, 4):
        p("v_xor_b32 v%d, %d, v%d" % (vAX + 5 + x, 4096 * x, vAX))
    p("v_add_u32 v%d, v%d, v%d" % (vAX + 9, vAX + 9, vAX + 10))
    p("v_and_b32 v%d, 0x678, v%d" % (vAX + 10, vAX + 9))
    for x, k in ((1, 0x200), (2, 0x500), (3, 0x700)):
        p("v_xor_b32 v%d, %d, v%d" % (vAX + 10 + x, k, vAX + 10))
    if KD:
        rd = kdma_read if LAST == "r" else (lambda t: read_kq(t, True))
        wait(12)
        rd(0)
        wait(8)
        st()
        rd(1)
        p("s_waitcnt lgkmcnt(%d)" % (0 if diag == 2 else 4))
        qk(0)
        p("s_waitcnt lgkmcnt(0)")
        qk(1)
    else:
        wait(12)
        qk(0)
        wait(8)
        qk(1, True)
    softmax()
    c("publish (scaled max, sum) of both q halves: lanes 0-31 carry half 0, lanes 32-63 half 1")
    p("v_permlane32_swap_b32 v%d, v%d" % (vL, vL + 1))
    p("v_permlane32_swap_b32 v%d, v%d" % (vNM, vNM + 1))
    p("v_add_f32 v%d, v%d, v%d" % (vL, vL, vL + 1))
    p("v_mov_b32 v%d, v%d" % (vL + 1, vL))
    p("v_permlane16_swap_b32 v%d, v%d" % (vL, vL + 1))
    p("v_add_f32 v%d, v%d, v%d" % (vNM + 1, vL, vL + 1))
    p("ds_write_b64 v%d, %s offset:%d" % (vAX + 9, vr(vNM, 2), ML_LDS))
    st()
    wait(4)
    perms(range(8), (0, 1))
    wait(0)
    st()

    def wr(x, jp):
        h, r = ((0, 2), (1, 0), (1, 2))[x - 1]
        p("ds_write2_b64 v%d, %s, %s offset0:%d offset1:%d" % (vAX + 2 * (x - 1) + jp // 2, vr(O(h, 2 * jp) + r, 2), vr(O(h, 2 * jp + 1) + r, 2), 128 * (jp % 2), 128 * (jp % 2) + 1))
    c("last PV; the three quarters other waves finish go to LDS as soon as their accumulators are complete")
    perms((0,), (2, 3))
    for j in range(8):
        if j < 7:
            perms((j + 1,), (2, 3))
        mf((j,), (1,))
    for j in range(8):
        mf((j,), (0,))
        wr(2 + j % 2, j // 2)
        if j in (5, 7):
            wr(1, (j - 5) // 2)
    if diag:
        p("s_memrealtime s[42:43]")
    wr(1, 2)
    wr(1, 3)
    p("s_waitcnt lgkmcnt(0)")
    st()
    p("s_barrier")
    st()
    ML, G = vS + 4, vS + 12
    X = lambda x, jp: vVb + 16 * (x - 1) + 4 * jp if x < 3 else vVT + 4 * jp
    for x in range(4):
        p("ds_read_b64 %s, v%d offset:%d" % (vr(ML + 2 * x, 2), vAX + 10 + x, ML_LDS))
    for jp in range(4):
        for x in range(1, 4):
            p("ds_read_b128 %s, v%d offset:%d" % (vr(X(x, jp), 4), vAX + 5 + x, 16384 * (x - 1) + 1024 * jp))
        if jp == 2:
            p("s_waitcnt lgkmcnt(%d)" % (0 if diag == 2 else 9))
            c("weights of the four partial results: 2^(max_w - max) / sum_w(2^(max_w - max) sum_w)")
            p("v_max3_f32 v%d, v%d, v%d, v%d" % (G, ML, ML + 2, ML + 4))
            p("v_max_f32 v%d, v%d, v%d" % (G, G, ML + 6))
    for w in range(4):
        p("v_sub_f32 v%d, v%d, v%d" % (ML + 2 * w, ML + 2 * w, G))
    for w in range(4):
        p("v_exp_f32 v%d, v%d" % (ML + 2 * w, ML + 2 * w))
    p("v_mul_f32 v%d, v%d, v%d" % (G, ML, ML + 1))
    for w in range(1, 4):
        p("v_fma_f32 v%d, v%d, v%d, v%d" % (G, ML + 2 * w, ML + 2 * w + 1, G))
    p("v_rcp_f32 v%d, v%d" % (G, G))
    for w in range(4):
        p("v_mul_f32 v%d, v%d, v%d" % (ML + 2 * w, ML + 2 * w, G))
    for j in range(8):
        p("v_pk_mul_f32 %s, %s, %s op_sel_hi:[1,0]" % (vr(O(0, j), 2), vr(O(0, j), 2), vr(ML, 2)))
    for jp in range(4):
        for x in range(1, 4):
            p("s_waitcnt lgkmcnt(%d)" % (11 - 3 * jp - (x - 1)))
            for k in range(2):
                o = O(0, 2 * jp + k)
                p("v_pk_fma_f32 %s, %s, %s, %s op_sel_hi:[1,0,1]" % (vr(o, 2), vr(X(x, jp) + 2 * k, 2), vr(ML + 2 * x, 2), vr(o, 2)))
        for r in range(2):
            p("v_cvt_pk_bf16_f32 v%d, v%d, v%d" % (vP + 4 * r + jp, O(0, 2 * jp) + r, O(0, 2 * jp + 1) + r))
    if OWN >= 2:
        for k in range(4):
            p("v_permlane16_swap_b32 v%d, v%d" % (vP + k, vP + 4 + k))
        for k in range(4):
            p("v_permlane32_swap_b32 v%d, v%d" % (vP + k, vP + 4 + k))
    src = (vP, vP + 4)
    if OWN == 3:
        src = (vS, vS + 4)
        p("s_mov_b32 vcc_lo, 0x00ff00ff")
        p("s_mov_b32 vcc_hi, 0x00ff00ff")
        for k in range(4):
            p("v_cndmask_b32_dpp v%d, v%d, v%d, vcc row_ror:8 row_mask:0xf bank_mask:0xf" % (vS + k, vP + 4 + k, vP + k))
        p("s_not_b64 vcc, vcc")
        for k in range(4):
            p("v_cndmask_b32_dpp v%d, v%d, v%d, vcc row_ror:8 row_mask:0xf bank_mask:0xf" % (vS + 4 + k, vP + k, vP + 4 + k))
    for r in range(2):
        p("buffer_store_dwordx4 %s, v%d, %s, 0 offen offset:%d %s" % (vr(src[r], 4), vAO, srd(sO), (16, 16, 64, 2048)[OWN] * r, OFL))
    if diag:
        st()
        p("s_waitcnt vmcnt(0)")
        p("s_memrealtime s[44:45]")
        p("s_getreg_b32 s46, hwreg(HW_REG_XCC_ID)")
        p("s_waitcnt lgkmcnt(0)")
        p("s_mov_b32 s47, 0")
        if RK:
            p("s_mov_b32 s47, s90")
            p("s_lshl_b32 s62, s62, 8")
            p("s_or_b32 s46, s46, s62")
        p("s_mov_b32 s56, s60\ns_mov_b32 s57, s61\ns_mov_b32 s58, 32768\ns_mov_b32 s59, 0x20000")
        for k in range(8):
            p("v_mov_b32 v%d, s%d" % (16 + k, 40 + k))
        p("s_lshl_b32 s33, s2, 7")
        p("s_lshr_b32 s36, s36, 6")
        p("s_add_u32 s33, s33, s36")
        p("v_mov_b32 v12, s33")
        p("v_cmp_eq_u32 vcc, 0, v%d" % vLane)
        p("s_and_saveexec_b64 s[50:51], vcc")
        p("buffer_store_dwordx4 v[16:19], v12, s[56:59], 0 offen")
        p("buffer_store_dwordx4 v[20:23], v12, s[56:59], 0 offen offset:16")
        if diag == 2:
            p("s_mov_b32 s58, 0x100000")
            p("v_add_u32 v12, 0x80000, v12")
            for k in range(6):
                p("v_mov_b32 v%d, s%d" % (24 + k, 64 + 2 * k))
            p("buffer_store_dwordx4 v[24:27], v12, s[56:59], 0 offen")
            p("buffer_store_dwordx2 v[28:29], v12, s[56:59], 0 offen offset:16")
    p("L_end:")
    p("s_endpgm")
    p.fix_hazards()
    trips = {"L_loop": [True] * (NT - 2 - npeel) + [False]}
    p.check_waits(trips)
    if FB or RK:
        t2 = dict(trips)
        for n in range(1, lab[0] + 1):
            t2["L_ri%d" % n] = [True] * 40
        p.check_waits(t2)
        t3 = dict(trips, L_f1=[True] * 40, L_f2=[True] * 40, L_f3=[True] * 40)
        for n in range(1, lab[0] + 1):
            t3["L_ca%d" % n] = [True] * 40
        p.check_waits(t3)
        for n in range(0, 12):
            p.check_waits(dict(trips, **{"L_path%d" % n: [True]}))
    lds = 131072 if (KD >= 2 or B14 or FB or RK) else (126976 if NR else 94208)
    return HEADER.replace("lds=131072", "lds=%d" % lds) + p.text() + FOOTER.format(nfv=acc + nA, nfs=96 if diag else (64 if (FB or RK) else 40), acc=acc)


if __name__ == "__main__":
    import argparse
    ap = argparse.ArgumentParser()
    ap.add_argument("-o")
    ap.add_argument("--hw", type=int, default=5)
    ap.add_argument("--own", type=int, default=0)
    ap.add_argument("--ofl", default="")
    ap.add_argument("--kd", type=int, default=1)
    ap.add_argument("--diag", type=int, nargs="?", const=1, default=0)
    ap.add_argument("--b14", action="store_true")
    ap.add_argument("--first", type=int, default=0)
    ap.add_argument("--nr", type=int, default=5)
    ap.add_argument("--dum", type=int, default=0)
    ap.add_argument("--rk", default=None)
    ap.add_argument("--fb", default=None)
    ap.add_argument("--hwr", type=int, default=None)
    ap.add_argument("--deep", type=int, default=0)
    ap.add_argument("--last", default="r")
    ap.add_argument("--ord", default="KV")
    ap.add_argument("--hwl", type=int, default=None)
    a = ap.parse_args()
    open(a.o, "w").write(gen(a.hw, a.own, a.ofl, a.kd, a.diag, a.last, a.ord, a.hwl, a.b14, a.first, a.deep, a.nr, a.hwr, tuple(int(x) for x in a.fb.split(',')) if a.fb else None, (tuple(int(x) for x in a.rk.split(',')[:4]) + (a.rk.split(',')[4],)) if a.rk else None, a.dum))
```
